```python
import torch

def _softmax(x, axis=-1):
    return torch.softmax(x, dim=axis)
def _gelu(x):
    return torch.nn.functional.gelu(x, approximate="tanh")
def _silu(x):
    return torch.nn.functional.silu(x)
def _sigmoid(x):
    return torch.sigmoid(x)
def _layernorm(x, axis=-1, eps=1e-5):
    m = x.mean(dim=axis, keepdim=True)
    v = x.var(dim=axis, keepdim=True, unbiased=False)
    return (x - m) / torch.sqrt(v + eps)
def _scatter_add(tgt, idx, src, axis=0):
    return tgt.clone().index_add_(axis, idx, src)
def _segment_sum(src, seg, n):
    out = torch.zeros((n,) + src.shape[1:], dtype=src.dtype)
    return out.index_add_(0, seg, src)
def _pad(x, pw):
    flat = tuple(v for pair in reversed(pw) for v in pair)
    return torch.nn.functional.pad(x, flat)

kernel_name = 'concat_heads__mha_block_cached__mha_block_cached__near_ridge'

def setup_inputs():

    _w = (lambda a: (lambda t: t.to(torch.bfloat16) if t.is_floating_point() else t)(torch.as_tensor(a)))
    def _A_setup():
        B, Sq, D = 8, 128, 576
        H, Sk, Dh = 32, 1024, 128
        return {
            "x": _w((lambda *s: torch.randn(*s, dtype=torch.bfloat16) * 0.8)(B, Sq, D)),
            "k_cache": _w((lambda *s: torch.randn(*s, dtype=torch.bfloat16) * 0.8)(B, H, Sk, Dh)),
            "v_cache": _w((lambda *s: torch.randn(*s, dtype=torch.bfloat16) * 0.05)(B, H, Sk, Dh)),
            "wq": _w((lambda *s: torch.randn(*s, dtype=torch.bfloat16) * 0.8)(D, H * Dh) * (D ** -0.5)),
            "wo": _w((lambda *s: torch.randn(*s, dtype=torch.bfloat16) * 0.05)(H * Dh, D) * ((H * Dh) ** -0.5)),
        }
    _A_in = _A_setup()

    def _B_setup():
        B, Sq, D = 8, 128, 576
        H, Sk, Dh = 32, 1024, 128
        return {
            "x": _w((lambda *s: torch.randn(*s, dtype=torch.bfloat16) * 0.8)(B, Sq, D)),
            "k_cache": _w((lambda *s: torch.randn(*s, dtype=torch.bfloat16) * 0.8)(B, H, Sk, Dh)),
            "v_cache": _w((lambda *s: torch.randn(*s, dtype=torch.bfloat16) * 0.05)(B, H, Sk, Dh)),
            "wq": _w((lambda *s: torch.randn(*s, dtype=torch.bfloat16) * 0.8)(D, H * Dh) * (D ** -0.5)),
            "wo": _w((lambda *s: torch.randn(*s, dtype=torch.bfloat16) * 0.05)(H * Dh, D) * ((H * Dh) ** -0.5)),
        }
    _B_in = _B_setup()

    return {
        "A_x": _A_in["x"],
        "A_k_cache": _A_in["k_cache"],
        "A_v_cache": _A_in["v_cache"],
        "A_wq": _A_in["wq"],
        "A_wo": _A_in["wo"],
        "B_x": _B_in["x"],
        "B_k_cache": _B_in["k_cache"],
        "B_v_cache": _B_in["v_cache"],
        "B_wq": _B_in["wq"],
        "B_wo": _B_in["wo"],
    }

def reference(A_x, A_k_cache, A_v_cache, A_wq, A_wo, B_x, B_k_cache, B_v_cache, B_wq, B_wo):
    def _A_ref(x, k_cache, v_cache, wq, wo):
        B, Sq, D = x.shape
        H, Dh = 32, 128
        q = (lambda x, *d: x.permute(*d))((x @ wq).reshape(B, Sq, H, Dh), 0, 2, 1, 3)
        scores = torch.einsum("bhqd,bhkd->bhqk", q, k_cache) * (Dh ** -0.5)
        p = _softmax(scores, axis=-1)
        o = torch.einsum("bhqk,bhkd->bhqd", p, v_cache)
        return (lambda x, *d: x.permute(*d))(o, 0, 2, 1, 3).reshape(B, Sq, H * Dh) @ wo

    def _B_ref(x, k_cache, v_cache, wq, wo):
        B, Sq, D = x.shape
        H, Dh = 32, 128
        q = (lambda x, *d: x.permute(*d))((x @ wq).reshape(B, Sq, H, Dh), 0, 2, 1, 3)
        scores = torch.einsum("bhqd,bhkd->bhqk", q, k_cache) * (Dh ** -0.5)
        p = _softmax(scores, axis=-1)
        o = torch.einsum("bhqk,bhkd->bhqd", p, v_cache)
        return (lambda x, *d: x.permute(*d))(o, 0, 2, 1, 3).reshape(B, Sq, H * Dh) @ wo

    a = _A_ref(A_x, A_k_cache, A_v_cache, A_wq, A_wo)
    b = _B_ref(B_x, B_k_cache, B_v_cache, B_wq, B_wo)
    return torch.concatenate([a, b], axis=-1)
```

```python
import sys, os
NOCOMP = int(os.environ.get("NOCOMP", "0"))

NAME = "concat_heads__mha_block_cached__mha_block_cached__near_ridge"
OUT = f"cdna_kernels/{NAME}.s"

L = []
INSM = [0]


def e(s=""):
    if NOCOMP & 1 and s.startswith("v_mfma"):
        return
    if NOCOMP & 2 and s.startswith("ds_read"):
        return
    if NOCOMP & 4 and INSM[0] and s.startswith("v_"):
        return
    L.append("    " + s if s and not s.endswith(":") else s)


def v(i, n=1):
    return f"v{i}" if n == 1 else f"v[{i}:{i + n - 1}]"


def s(i, n=1):
    return f"s{i}" if n == 1 else f"s[{i}:{i + n - 1}]"


SLOT = 16384
NSLOT = int(os.environ.get("NSLOT", "5"))
OUT = os.environ.get("OUT", OUT)
VMW = 4 * (NSLOT - 2)
import struct


def f32bits(x):
    return struct.unpack("<I", struct.pack("<f", x))[0]


def gen_attn():
    SK, SV, SW, SX, SO = 8, 12, 16, 20, 24
    sPTR = 28
    sWS = 36
    sH, sB, sBLK = 38, 39, 40
    sRD, sWR, sWAVE = 41, 42, 43
    sKOFF, sVOFF, sWOFF = 44, 45, 46
    sCNT = 47
    sC = 48
    sT = 49
    sW = 50
    vTID = 0
    vTRB = 1
    vTRA = 5
    vOW = 9
    vOK = 13
    vOV = 17
    vT0, vT1, vT2, vT3 = 18, 19, 20, 21
    vLANE = 22
    vOX = 23
    vACC = 24
    vFR = 88
    NFR = 6
    vX = 112
    vQ = 112
    vS = 144
    vP = 176
    vKF = 192
    NKF = 8
    vKB = 224
    vKA = 232
    vM, vLs, vAL, vMC = 240, 241, 242, 243
    vU0, vU1, vU2, vU3 = 244, 245, 246, 247
    vOO = 248

    e("attn_kernel:")
    e("s_cmp_ge_u32 s2, 512")
    e("s_cbranch_scc1 L_attn_end")
    e("s_and_b32 s3, s2, 7")
    e("s_lshr_b32 s4, s2, 3")
    e("s_and_b32 s5, s4, 3")
    e("s_lshl_b32 s5, s5, 3")
    e(f"s_or_b32 {s(sH)}, s5, s3")
    e("s_lshr_b32 s4, s4, 2")
    e(f"s_and_b32 {s(sB)}, s4, 7")
    e(f"s_lshr_b32 {s(sBLK)}, s4, 3")
    e(f"s_mul_i32 s3, {s(sBLK)}, 40")
    e("s_add_u32 s4, s0, s3")
    e("s_addc_u32 s5, s1, 0")
    e(f"s_load_dwordx8 {s(sPTR, 8)}, s[4:5], 0")
    e(f"s_load_dwordx2 {s(sWS, 2)}, s[0:1], 96")
    e(f"v_and_b32 {v(vLANE)}, 63, v0")
    e(f"v_lshrrev_b32 {v(vT0)}, 6, v0")
    e("s_nop 0")
    e(f"v_readfirstlane_b32 {s(sW)}, {v(vT0)}")
    e(f"s_lshl_b32 {s(sWAVE)}, {s(sW)}, 12")
    e(f"v_lshrrev_b32 {v(vT1)}, 4, {v(vLANE)}")
    e(f"v_and_b32 {v(vT2)}, 15, {v(vLANE)}")
    e(f"v_lshl_add_u32 {v(vT3)}, {v(vT0)}, 4, {v(vT1)}")
    e(f"v_lshlrev_b32 {v(vOV)}, 2, {v(vT1)}")
    e(f"v_xor_b32 {v(vOV)}, {v(vOV)}, {v(vT2)}")
    e(f"v_lshlrev_b32 {v(vOV)}, 4, {v(vOV)}")
    for n in range(4):
        e(f"v_add_u32 {v(vOW + n)}, {4 * n}, {v(vT3)}")
        e(f"v_lshl_add_u32 {v(vOW + n)}, {v(vOW + n)}, 13, {v(vOV)}")
        if n:
            e(f"v_subrev_u32 {v(vOW + n)}, {1024 * n}, {v(vOW + n)}")
    e(f"v_lshl_add_u32 {v(vOV)}, {v(vT3)}, 8, {v(vOV)}")
    for n in range(4):
        e(f"v_add_u32 {v(vOK + n)}, {4 * n}, {v(vT1)}")
        e(f"v_xor_b32 {v(vOK + n)}, {v(vOK + n)}, {v(vT2)}")
        e(f"v_lshlrev_b32 {v(vOK + n)}, 4, {v(vOK + n)}")
        e(f"v_lshl_add_u32 {v(vOK + n)}, {v(vT3)}, 8, {v(vOK + n)}")
    e(f"v_and_b32 {v(vT1)}, 31, {v(vLANE)}")
    e(f"v_lshl_add_u32 {v(vT1)}, {v(vT0)}, 5, {v(vT1)}")
    e(f"v_mul_u32_u24 {v(vOX)}, 1152, {v(vT1)}")
    e(f"v_lshrrev_b32 {v(vT1)}, 5, {v(vLANE)}")
    e(f"v_lshl_add_u32 {v(vOX)}, {v(vT1)}, 4, {v(vOX)}")

    def trbase(sigma):
        e(f"v_lshrrev_b32 {v(vT0)}, 5, {v(vLANE)}")
        e(f"v_bfe_u32 {v(vT1)}, {v(vLANE)}, 2, 2")
        e(f"v_lshl_add_u32 {v(vT0)}, {v(vT0)}, 3, {v(vT1)}")
        e(f"v_lshlrev_b32 {v(vT0)}, 8, {v(vT0)}")
        e(f"v_bfe_u32 {v(vT2)}, {v(vLANE)}, 4, 1")
        e(f"v_lshl_add_u32 {v(vT0)}, {v(vT2)}, 5, {v(vT0)}")
        if sigma:
            e(f"v_and_b32 {v(vT2)}, 1, {v(vLANE)}")
            e(f"v_bfe_u32 {v(vT3)}, {v(vLANE)}, 1, 1")
        else:
            e(f"v_bfe_u32 {v(vT2)}, {v(vLANE)}, 1, 1")
            e(f"v_and_b32 {v(vT3)}, 1, {v(vLANE)}")
        e(f"v_lshl_add_u32 {v(vT0)}, {v(vT2)}, 4, {v(vT0)}")
        e(f"v_lshl_add_u32 {v(vT0)}, {v(vT3)}, 3, {v(vT0)}")
        for D in range(4):
            e(f"v_xor_b32 {v(vT2)}, {D}, {v(vT1)}")
            e(f"v_lshl_add_u32 {v(vTRB + D)}, {v(vT2)}, 6, {v(vT0)}")

    trbase(True)

    e("s_waitcnt lgkmcnt(0)")
    e(f"s_lshl_b32 s3, {s(sB)}, 5")
    e(f"s_add_u32 s3, s3, {s(sH)}")
    e("s_lshl_b32 s3, s3, 18")
    for (S, p) in ((SK, sPTR + 2), (SV, sPTR + 4)):
        e(f"s_add_u32 {s(S)}, {s(p)}, s3")
        e(f"s_addc_u32 {s(S + 1)}, {s(p + 1)}, 0")
        e(f"s_mov_b32 {s(S + 2)}, 262144")
        e(f"s_mov_b32 {s(S + 3)}, 0x20000")
    e(f"s_mul_i32 s3, {s(sB)}, 147456")
    e(f"s_add_u32 {s(SX)}, {s(sPTR)}, s3")
    e(f"s_addc_u32 {s(SX + 1)}, {s(sPTR + 1)}, 0")
    e(f"s_mov_b32 {s(SX + 2)}, 147456")
    e(f"s_mov_b32 {s(SX + 3)}, 0x20000")
    e(f"s_lshl_b32 s3, {s(sH)}, 8")
    e(f"s_add_u32 {s(SW)}, {s(sPTR + 6)}, s3")
    e(f"s_addc_u32 {s(SW + 1)}, {s(sPTR + 7)}, 0")
    e(f"s_sub_u32 {s(SW + 2)}, {576 * 8192}, s3")
    e(f"s_mov_b32 {s(SW + 3)}, 0x20000")
    e(f"s_lshl_b32 s3, {s(sBLK)}, 3")
    e(f"s_add_u32 s3, s3, {s(sB)}")
    e("s_lshl_b32 s3, s3, 20")
    e(f"s_lshl_b32 s4, {s(sH)}, 12")
    e("s_add_u32 s3, s3, s4")
    e(f"s_add_u32 {s(SO)}, {s(sWS)}, s3")
    e(f"s_addc_u32 {s(SO + 1)}, {s(sWS + 1)}, 0")
    e(f"s_sub_u32 {s(SO + 2)}, {1 << 20}, s4")
    e(f"s_mov_b32 {s(SO + 3)}, 0x20000")
    e(f"s_mov_b32 {s(sC)}, {f32bits(128 ** -0.5 * 1.4426950408889634):#x}")
    e(f"s_mov_b32 {s(sRD)}, 0")
    e(f"s_mov_b32 {s(sWR)}, 0")
    e(f"s_mov_b32 {s(sKOFF)}, 0")
    e(f"s_mov_b32 {s(sVOFF)}, 0")
    e(f"s_mov_b32 {s(sWOFF)}, 0")

    def dma(kind):
        e(f"s_add_u32 m0, {s(sWR)}, {s(sWAVE)}")
        e(f"s_add_u32 {s(sWR)}, {s(sWR)}, {SLOT}")
        for n in range(4):
            if kind == "W":
                e(f"buffer_load_dwordx4 {v(vOW + n)}, {s(SW, 4)}, {s(sWOFF)} offen offset:{1024 * n} lds")
            elif kind == "K":
                e(f"buffer_load_dwordx4 {v(vOK + n)}, {s(SK, 4)}, {s(sKOFF)} offen offset:{1024 * n} lds")
            else:
                e(f"buffer_load_dwordx4 {v(vOV)}, {s(SV, 4)}, {s(sVOFF)} offen offset:{1024 * n} lds")
        if kind == "W":
            e(f"s_add_u32 {s(sWOFF)}, {s(sWOFF)}, {64 * 8192}")
        elif kind == "K":
            e(f"s_add_u32 {s(sKOFF)}, {s(sKOFF)}, {SLOT}")
        else:
            e(f"s_add_u32 {s(sVOFF)}, {s(sVOFF)}, {SLOT}")
        e(f"s_cmp_eq_u32 {s(sWR)}, {SLOT * NSLOT}")
        e(f"s_cselect_b32 {s(sWR)}, 0, {s(sWR)}")

    def adv_rd():
        e(f"s_add_u32 {s(sRD)}, {s(sRD)}, {SLOT}")
        e(f"s_cmp_eq_u32 {s(sRD)}, {SLOT * NSLOT}")
        e(f"s_cselect_b32 {s(sRD)}, 0, {s(sRD)}")

    for t in range(36):
        e(f"buffer_load_dwordx4 {v(vX + 4 * t, 4)}, {v(vOX)}, {s(SX, 4)}, 0 offen offset:{32 * t}")
    for T in range(NSLOT - 1):
        dma("W")

    def tr_gemm(bfrag, first):
        for D in range(4):
            e(f"v_add_u32 {v(vTRA + D)}, {s(sRD)}, {v(vTRB + D)}")
        adv_rd()

        def rd(f):
            u, D = f >> 2, f & 3
            r = vFR + 4 * (f % NFR)
            e(f"ds_read_b64_tr_b16 {v(r, 2)}, {v(vTRA + D)} offset:{4096 * u}")
            e(f"ds_read_b64_tr_b16 {v(r + 2, 2)}, {v(vTRA + D)} offset:{4096 * u + 1024}")

        for f in range(NFR - 1):
            rd(f)
        for f in range(16):
            u, D = f >> 2, f & 3
            inflight = min(NFR - 1, 16 - f)
            e(f"s_waitcnt lgkmcnt({2 * (inflight - 1)})")
            r = vFR + 4 * (f % NFR)
            c = "0" if (first and u == 0) else v(vACC + 16 * D, 16)
            e(f"v_mfma_f32_32x32x16_bf16 {v(vACC + 16 * D, 16)}, {v(r, 4)}, {v(bfrag(u), 4)}, {c}")
            if f + NFR - 1 < 16:
                rd(f + NFR - 1)

    for T in range(9):
        e(f"s_waitcnt vmcnt({VMW})")
        e("s_barrier")
        n = T + NSLOT - 1
        dma("W" if n < 9 else ("K" if (n - 9) % 2 == 0 else "V"))
        tr_gemm(lambda u, T=T: vX + 4 * (4 * T + u), T == 0)

    trbase(False)
    e(f"v_and_b32 {v(vT0)}, 0x13, {v(vLANE)}")
    e(f"v_bfe_u32 {v(vT1)}, {v(vLANE)}, 2, 1")
    e(f"v_lshl_or_b32 {v(vT0)}, {v(vT1)}, 3, {v(vT0)}")
    e(f"v_bfe_u32 {v(vT1)}, {v(vLANE)}, 3, 1")
    e(f"v_lshl_or_b32 {v(vT0)}, {v(vT1)}, 2, {v(vT0)}")
    e(f"v_and_b32 {v(vT1)}, 15, {v(vT0)}")
    e(f"v_lshrrev_b32 {v(vT2)}, 5, {v(vLANE)}")
    e(f"v_xor_b32 {v(vT1)}, {v(vT1)}, {v(vT2)}")
    e(f"v_lshlrev_b32 {v(vT0)}, 8, {v(vT0)}")
    e("s_nop 4")
    for t in range(8):
        e(f"v_xor_b32 {v(vT2)}, {2 * t}, {v(vT1)}")
        e(f"v_lshl_add_u32 {v(vKB + t)}, {v(vT2)}, 4, {v(vT0)}")
    e(f"v_bfe_u32 {v(vT0)}, {v(vLANE)}, 4, 1")
    e(f"v_lshl_add_u32 {v(vT0)}, {s(sW)}, 1, {v(vT0)}")
    e(f"v_lshlrev_b32 {v(vT0)}, 17, {v(vT0)}")
    e(f"v_and_b32 {v(vT1)}, 15, {v(vLANE)}")
    e(f"v_lshrrev_b32 {v(vT2)}, 5, {v(vLANE)}")
    e(f"v_lshl_add_u32 {v(vT1)}, {v(vT2)}, 4, {v(vT1)}")
    e(f"v_lshl_add_u32 {v(vOO)}, {v(vT1)}, 4, {v(vT0)}")
    for i in range(32):
        e(f"v_cvt_pk_bf16_f32 {v(vQ + i)}, {v(vACC + 2 * i)}, {v(vACC + 2 * i + 1)}")
    for i in range(64):
        e(f"v_mov_b32 {v(vACC + i)}, 0")
    e(f"v_mov_b32 {v(vM)}, 0xff7fffff")
    e(f"v_mov_b32 {v(vLs)}, 0")
    e(f"s_mov_b32 {s(sCNT)}, 0")

    e("L_attn_loop:")
    e(f"s_waitcnt vmcnt({VMW})")
    e("s_barrier")
    dma("K" if (NSLOT - 1) % 2 == 0 else "V")
    for t in range(8):
        e(f"v_add_u32 {v(vKA + t)}, {s(sRD)}, {v(vKB + t)}")
    adv_rd()

    def krd(f):
        kb, t = f >> 3, f & 7
        e(f"ds_read_b128 {v(vKF + 4 * (f % NKF), 4)}, {v(vKA + t)} offset:{8192 * kb}")

    for f in range(NKF - 1):
        krd(f)
    for f in range(16):
        kb, t = f >> 3, f & 7
        inflight = min(NKF - 1, 16 - f)
        e(f"s_waitcnt lgkmcnt({inflight - 1})")
        c = "0" if t == 0 else v(vS + 16 * kb, 16)
        e(f"v_mfma_f32_32x32x16_bf16 {v(vS + 16 * kb, 16)}, {v(vKF + 4 * (f % NKF), 4)}, {v(vQ + 4 * t, 4)}, {c}")
        if f + NKF - 1 < 16:
            krd(f + NKF - 1)
    INSM[0] = 1
    e(f"v_max3_f32 {v(vU0)}, {v(vS + 0)}, {v(vS + 1)}, {v(vM)}")
    e(f"v_max3_f32 {v(vU1)}, {v(vS + 2)}, {v(vS + 3)}, {v(vS + 4)}")
    for k, i in enumerate(range(5, 15, 2)):
        u = vU0 if k % 2 == 0 else vU1
        e(f"v_max3_f32 {v(u)}, {v(u)}, {v(vS + i)}, {v(vS + i + 1)}")
    e("s_nop 7")
    for k, i in enumerate(range(15, 31, 2)):
        u = vU1 if k % 2 == 0 else vU0
        e(f"v_max3_f32 {v(u)}, {v(u)}, {v(vS + i)}, {v(vS + i + 1)}")
    e(f"v_max3_f32 {v(vU0)}, {v(vU0)}, {v(vU1)}, {v(vS + 31)}")
    e(f"v_mov_b32 {v(vU1)}, {v(vU0)}")
    e("s_nop 1")
    e(f"v_permlane32_swap_b32 {v(vU0)}, {v(vU1)}")
    e(f"v_max_f32 {v(vU0)}, {v(vU0)}, {v(vU1)}")
    e(f"v_mul_f32 {v(vMC)}, {s(sC)}, {v(vU0)}")
    e(f"v_fma_f32 {v(vAL)}, {v(vM)}, {s(sC)}, -{v(vMC)}")
    e(f"v_mov_b32 {v(vM)}, {v(vU0)}")
    e(f"v_exp_f32 {v(vAL)}, {v(vAL)}")
    for i in range(32):
        e(f"v_fma_f32 {v(vS + i)}, {v(vS + i)}, {s(sC)}, -{v(vMC)}")
    for i in range(32):
        e(f"v_exp_f32 {v(vS + i)}, {v(vS + i)}")
    e(f"v_mul_f32 {v(vLs)}, {v(vLs)}, {v(vAL)}")
    e(f"v_add_f32 {v(vU0)}, {v(vS + 0)}, {v(vS + 1)}")
    e(f"v_add_f32 {v(vU1)}, {v(vS + 2)}, {v(vS + 3)}")
    e(f"v_add_f32 {v(vU2)}, {v(vS + 4)}, {v(vS + 5)}")
    e(f"v_add_f32 {v(vU3)}, {v(vS + 6)}, {v(vS + 7)}")
    for i in range(8, 32, 4):
        e(f"v_add_f32 {v(vU0)}, {v(vU0)}, {v(vS + i)}")
        e(f"v_add_f32 {v(vU1)}, {v(vU1)}, {v(vS + i + 1)}")
        e(f"v_add_f32 {v(vU2)}, {v(vU2)}, {v(vS + i + 2)}")
        e(f"v_add_f32 {v(vU3)}, {v(vU3)}, {v(vS + i + 3)}")
    for i in range(16):
        e(f"v_cvt_pk_bf16_f32 {v(vP + i)}, {v(vS + 2 * i)}, {v(vS + 2 * i + 1)}")
    e(f"v_add_f32 {v(vU0)}, {v(vU0)}, {v(vU1)}")
    e(f"v_add_f32 {v(vU2)}, {v(vU2)}, {v(vU3)}")
    e(f"v_add_f32 {v(vLs)}, {v(vLs)}, {v(vU0)}")
    e(f"v_add_f32 {v(vLs)}, {v(vLs)}, {v(vU2)}")
    for i in range(64):
        e(f"v_mul_f32 {v(vACC + i)}, {v(vACC + i)}, {v(vAL)}")
    INSM[0] = 0
    e(f"s_waitcnt vmcnt({VMW})")
    e("s_barrier")
    dma("V" if (NSLOT - 1) % 2 == 0 else "K")
    tr_gemm(lambda u: vP + 4 * u, False)
    e(f"s_add_u32 {s(sCNT)}, {s(sCNT)}, 1")
    e(f"s_cmp_lt_u32 {s(sCNT)}, 16")
    e("s_cbranch_scc1 L_attn_loop")

    e(f"v_mov_b32 {v(vU1)}, {v(vLs)}")
    e("s_nop 1")
    e(f"v_permlane32_swap_b32 {v(vLs)}, {v(vU1)}")
    e(f"v_add_f32 {v(vLs)}, {v(vLs)}, {v(vU1)}")
    e(f"v_rcp_f32 {v(vLs)}, {v(vLs)}")
    e("s_nop 7")
    e("s_nop 3")
    for i in range(64):
        e(f"v_mul_f32 {v(vACC + i)}, {v(vACC + i)}, {v(vLs)}")
    for D in range(4):
        for p in range(2):
            r = vS + 8 * D + 4 * p
            a = vACC + 16 * D + 4 * p
            e(f"v_cvt_pk_bf16_f32 {v(r)}, {v(a)}, {v(a + 1)}")
            e(f"v_cvt_pk_bf16_f32 {v(r + 1)}, {v(a + 2)}, {v(a + 3)}")
            e(f"v_cvt_pk_bf16_f32 {v(r + 2)}, {v(a + 8)}, {v(a + 9)}")
            e(f"v_cvt_pk_bf16_f32 {v(r + 3)}, {v(a + 10)}, {v(a + 11)}")
            e(f"buffer_store_dwordx4 {v(r, 4)}, {v(vOO)}, {s(SO, 4)}, 0 offen offset:{1024 * D + 512 * p}")
    e("s_waitcnt vmcnt(0)")
    e("L_attn_end:")
    e("s_endpgm")


def gen_oproj():
    SW, SOo, SP, SD, SOUT = 8, 12, 16, 20, 24
    sBLK, sSP, sB, sCT, sW = 28, 29, 30, 31, 32
    sWO, sWS, sOUT, sDBG = 34, 36, 38, 40
    sM0, sWOFF, sOOFF, sT = 42, 43, 44, 45
    sTILE = 46
    STG = 128 * 288
    NS = 4
    vLANE, vT0, vT1, vT2, vT3 = 1, 2, 3, 4, 5
    vOW = 6
    vOO = 15
    vTRB = 17
    vTRA = 18
    vPO = 19
    vACC = 24
    vFR = 96
    NFR = 8
    vOB = 128

    e("oproj_kernel:")
    e("s_cmp_ge_u32 s2, 256")
    e("s_cbranch_scc1 L_op_end")
    e(f"s_and_b32 {s(sSP)}, s2, 3")
    e(f"s_bfe_u32 {s(sBLK)}, s2, 0x10002")
    e(f"s_bfe_u32 {s(sCT)}, s2, 0x20003")
    e(f"s_lshr_b32 {s(sB)}, s2, 5")
    e(f"s_mul_i32 s3, {s(sBLK)}, 40")
    e("s_add_u32 s4, s0, s3")
    e("s_addc_u32 s5, s1, 0")
    e(f"s_load_dwordx2 {s(sWO, 2)}, s[4:5], 32")
    e(f"s_load_dwordx2 {s(sOUT, 2)}, s[0:1], 80")
    e(f"s_load_dwordx2 {s(sDBG, 2)}, s[0:1], 88")
    e(f"s_load_dwordx2 {s(sWS, 2)}, s[0:1], 96")
    e(f"v_and_b32 {v(vLANE)}, 63, v0")
    e(f"v_lshrrev_b32 {v(vT0)}, 6, v0")
    e("s_nop 0")
    e(f"v_readfirstlane_b32 {s(sW)}, {v(vT0)}")
    e(f"v_mul_u32_u24 {v(vT0)}, 576, {v(vT0)}")
    e(f"v_add_u32 {v(vT0)}, {v(vT0)}, {v(vLANE)}")
    for n in range(9):
        e(f"v_add_u32 {v(vT1)}, {64 * n}, {v(vT0)}")
        e(f"v_mul_u32_u24 {v(vT2)}, 3641, {v(vT1)}")
        e(f"v_lshrrev_b32 {v(vT2)}, 16, {v(vT2)}")
        e(f"v_mul_u32_u24 {v(vT3)}, 18, {v(vT2)}")
        e(f"v_sub_u32 {v(vT3)}, {v(vT1)}, {v(vT3)}")
        e(f"v_mul_u32_u24 {v(vT2)}, 1152, {v(vT2)}")
        e(f"v_lshl_add_u32 {v(vOW + n)}, {v(vT3)}, 4, {v(vT2)}")
        if n % 4:
            e(f"v_subrev_u32 {v(vOW + n)}, {1024 * (n % 4)}, {v(vOW + n)}")
    e(f"v_lshrrev_b32 {v(vT0)}, 2, {v(vLANE)}")
    e(f"v_mul_u32_u24 {v(vT0)}, 288, {v(vT0)}")
    e(f"v_and_b32 {v(vT1)}, 3, {v(vLANE)}")
    e(f"v_lshl_add_u32 {v(vTRB)}, {v(vT1)}, 3, {v(vT0)}")
    e(f"s_lshl_b32 s3, {s(sW)}, 18")
    e(f"s_lshl_b32 s4, {s(sSP)}, 15")
    e("s_add_u32 s3, s3, s4")
    e(f"v_lshlrev_b32 {v(vT0)}, 4, {v(vLANE)}")
    e(f"v_add_u32 {v(vOO)}, s3, {v(vT0)}")
    e(f"v_add_u32 {v(vOO + 1)}, 0x20000, {v(vOO)}")
    e("s_waitcnt lgkmcnt(0)")
    e(f"s_mul_i32 s3, {s(sSP)}, {1024 * 1152}")
    e(f"s_mul_i32 s4, {s(sCT)}, 288")
    e("s_add_u32 s3, s3, s4")
    e(f"s_add_u32 {s(SW)}, {s(sWO)}, s3")
    e(f"s_addc_u32 {s(SW + 1)}, {s(sWO + 1)}, 0")
    e(f"s_sub_u32 {s(SW + 2)}, {4096 * 1152}, s3")
    e(f"s_mov_b32 {s(SW + 3)}, 0x20000")
    e(f"s_lshl_b32 s3, {s(sBLK)}, 3")
    e(f"s_add_u32 s3, s3, {s(sB)}")
    e(f"s_lshl_b32 {s(sTILE)}, s3, 2")
    e(f"s_add_u32 {s(sTILE)}, {s(sTILE)}, {s(sCT)}")
    e("s_lshl_b32 s3, s3, 20")
    e(f"s_add_u32 {s(SOo)}, {s(sWS)}, s3")
    e(f"s_addc_u32 {s(SOo + 1)}, {s(sWS + 1)}, 0")
    e(f"s_mov_b32 {s(SOo + 2)}, {1 << 20}")
    e(f"s_mov_b32 {s(SOo + 3)}, 0x20000")
    e(f"s_mul_i32 s3, {s(sTILE)}, {16 * 18432}")
    e(f"s_add_u32 s3, s3, {16 << 20}")
    e(f"s_add_u32 {s(SP)}, {s(sWS)}, s3")
    e(f"s_addc_u32 {s(SP + 1)}, {s(sWS + 1)}, 0")
    e(f"s_mov_b32 {s(SP + 2)}, {16 * 18432}")
    e(f"s_mov_b32 {s(SP + 3)}, 0x20000")
    e(f"s_mov_b32 {s(SD)}, {s(sDBG)}")
    e(f"s_mov_b32 {s(SD + 1)}, {s(sDBG + 1)}")
    e(f"s_mov_b32 {s(SD + 2)}, 256")
    e(f"s_mov_b32 {s(SD + 3)}, 0x20000")
    e(f"s_lshl_b32 s3, {s(sB)}, 7")
    e(f"s_lshl_b32 s4, {s(sSP)}, 5")
    e("s_add_u32 s3, s3, s4")
    e("s_mul_i32 s3, s3, 2304")
    e(f"s_mul_i32 s4, {s(sBLK)}, 1152")
    e("s_add_u32 s3, s3, s4")
    e(f"s_mul_i32 s4, {s(sCT)}, 288")
    e("s_add_u32 s3, s3, s4")
    e(f"s_add_u32 {s(SOUT)}, {s(sOUT)}, s3")
    e(f"s_addc_u32 {s(SOUT + 1)}, {s(sOUT + 1)}, 0")
    e(f"s_sub_u32 {s(SOUT + 2)}, {1024 * 2304}, s3")
    e(f"s_mov_b32 {s(SOUT + 3)}, 0x20000")
    e(f"s_mul_i32 {s(sM0)}, {s(sW)}, 9216")

    def issue(st):
        slot = (st % NS) * STG
        e(f"s_mov_b32 {s(sWOFF)}, {st * 128 * 1152}")
        for n in range(9):
            if n % 4 == 0:
                e(f"s_add_u32 m0, {s(sM0)}, {slot + 1024 * n}")
                e("s_nop 0")
            e(f"buffer_load_dwordx4 {v(vOW + n)}, {s(SW, 4)}, {s(sWOFF)} offen offset:{1024 * (n % 4)} lds")
        e(f"s_mov_b32 {s(sOOFF)}, {st * 4096}")
        for ks in range(4):
            for rh in range(2):
                r = vOB + 32 * (st % 4) + 8 * ks + 4 * rh
                e(f"buffer_load_dwordx4 {v(r, 4)}, {v(vOO + rh)}, {s(SOo, 4)}, {s(sOOFF)} offen offset:{1024 * ks}")

    for st in range(3):
        issue(st)
    for st in range(8):
        e(f"s_waitcnt vmcnt({17 * min(2, 7 - st)})")
        e("s_barrier")
        if st + 3 < 8:
            issue(st + 3)
        e(f"v_add_u32 {v(vTRA)}, {(st % NS) * STG}, {v(vTRB)}")

        def rd(f):
            ks, nb = f // 9, f % 9
            r = vFR + 4 * (f % NFR)
            e(f"ds_read_b64_tr_b16 {v(r, 2)}, {v(vTRA)} offset:{32 * ks * 288 + 32 * nb}")
            e(f"ds_read_b64_tr_b16 {v(r + 2, 2)}, {v(vTRA)} offset:{(32 * ks + 16) * 288 + 32 * nb}")

        for f in range(NFR - 1):
            rd(f)
        for f in range(36):
            ks, nb = f // 9, f % 9
            inflight = min(NFR - 1, 36 - f)
            e(f"s_waitcnt lgkmcnt({2 * (inflight - 1)})")
            r = vFR + 4 * (f % NFR)
            for rh in range(2):
                a = vACC + 8 * nb + 4 * rh
                c = "0" if (st == 0 and ks == 0) else v(a, 4)
                ob = vOB + 32 * (st % 4) + 8 * ks + 4 * rh
                e(f"v_mfma_f32_16x16x32_bf16 {v(a, 4)}, {v(r, 4)}, {v(ob, 4)}, {c}")
            if f + NFR - 1 < 36:
                rd(f + NFR - 1)
    e(f"s_lshl_b32 s3, {s(sW)}, 2")
    e(f"s_add_u32 s3, s3, {s(sSP)}")
    e("s_mul_i32 s3, s3, 18432")
    e(f"v_lshlrev_b32 {v(vT0)}, 4, {v(vLANE)}")
    e(f"v_add_u32 {v(vPO)}, s3, {v(vT0)}")
    e(f"v_add_u32 {v(vPO + 1)}, 4096, {v(vPO)}")
    e(f"v_add_u32 {v(vPO + 2)}, 8192, {v(vPO)}")
    e(f"v_add_u32 {v(vPO + 3)}, 12288, {v(vPO)}")
    e(f"v_add_u32 {v(vPO + 4)}, 16384, {v(vPO)}")
    e("s_nop 4")
    e(f"s_cmp_eq_u32 {s(sW)}, {s(sSP)}")
    e("s_cbranch_scc1 L_op_nostore")
    for f in range(18):
        e(f"buffer_store_dwordx4 {v(vACC + 4 * f, 4)}, {v(vPO + f // 4)}, {s(SP, 4)}, 0 offen offset:{1024 * (f % 4)} sc0 sc1")
    e("s_waitcnt vmcnt(0)")
    e("L_op_nostore:")
    e("s_barrier")
    e(f"s_cmp_eq_u32 {s(sW)}, {s(sSP)}")
    e("s_cbranch_scc0 L_op_end")
    e(f"s_lshl_b32 s3, {s(sTILE)}, 2")
    e(f"v_mov_b32 {v(vT0)}, s3")
    e(f"v_mov_b32 {v(vT1)}, 1")
    e("s_mov_b64 s[4:5], exec")
    e("s_mov_b64 exec, 1")
    e(f"buffer_atomic_add {v(vT1)}, {v(vT0)}, {s(SD, 4)}, 0 offen sc1")
    e("s_mov_b64 exec, s[4:5]")
    e(f"s_mov_b32 {s(sT)}, 0")
    e("L_op_poll:")
    e(f"buffer_load_dword {v(vT1)}, {v(vT0)}, {s(SD, 4)}, 0 offen sc0 sc1")
    e("s_waitcnt vmcnt(0)")
    e(f"v_readfirstlane_b32 s3, {v(vT1)}")
    e(f"s_add_u32 {s(sT)}, {s(sT)}, 1")
    e("s_cmp_ge_u32 s3, 4")
    e("s_cbranch_scc1 L_op_ready")
    e(f"s_cmp_lt_u32 {s(sT)}, 0x100000")
    e("s_cbranch_scc1 L_op_poll")
    e("L_op_ready:")
    e(f"v_lshlrev_b32 {v(vT0)}, 4, {v(vLANE)}")
    for k in range(1, 4):
        e(f"s_add_u32 s3, {s(sSP)}, {k}")
        e("s_and_b32 s3, s3, 3")
        e(f"s_lshl_b32 s4, {s(sSP)}, 2")
        e("s_add_u32 s3, s3, s4")
        e("s_mul_i32 s3, s3, 18432")
        for f in range(18):
            if f % 4 == 0:
                e(f"s_add_u32 s4, s3, {1024 * f}")
            dst = v(96 + 72 * (k - 1) + 4 * f, 4) if k < 3 else f"a[{4 * f}:{4 * f + 3}]"
            e(f"buffer_load_dwordx4 {dst}, {v(vT0)}, {s(SP, 4)}, s4 offen offset:{1024 * (f % 4)} sc0 sc1")
    e(f"v_and_b32 {v(vT1)}, 15, {v(vLANE)}")
    e(f"v_mul_u32_u24 {v(vT1)}, 2304, {v(vT1)}")
    e(f"v_lshrrev_b32 {v(vT2)}, 4, {v(vLANE)}")
    e(f"v_lshl_add_u32 {v(vT1)}, {v(vT2)}, 3, {v(vT1)}")
    e(f"v_add_u32 {v(vT2)}, {16 * 2304}, {v(vT1)}")
    e("s_waitcnt vmcnt(0)")
    for i in range(72):
        e(f"v_add_f32 {v(96 + i)}, {v(96 + i)}, {v(168 + i)}")
        e(f"v_accvgpr_read_b32 {v(168 + i)}, a{i}")
    for i in range(72):
        e(f"v_add_f32 {v(vACC + i)}, {v(vACC + i)}, {v(168 + i)}")
    for i in range(72):
        e(f"v_add_f32 {v(vACC + i)}, {v(vACC + i)}, {v(96 + i)}")
    for nb in range(9):
        for rh in range(2):
            a = vACC + 8 * nb + 4 * rh
            e(f"v_cvt_pk_bf16_f32 {v(a)}, {v(a)}, {v(a + 1)}")
            e(f"v_cvt_pk_bf16_f32 {v(a + 1)}, {v(a + 2)}, {v(a + 3)}")
            e(f"buffer_store_dwordx2 {v(a, 2)}, {v(vT1 if rh == 0 else vT2)}, {s(SOUT, 4)}, 0 offen offset:{32 * nb}")
    e("s_waitcnt vmcnt(0)")
    e("L_op_end:")
    e("s_endpgm")


def main():
    hdr = open(f"cdna_kernels/{NAME}.s.ref").read().split("\n")
    head = [x for x in hdr if x.startswith(";") and "@launch" not in x and "Override" not in x and "grid=ceil" not in x]
    out = head[:]
    out.append("; @launch kernel=attn_kernel grid=(512,1,1) block=(256,1,1) lds=%d" % (SLOT * NSLOT))
    out.append("; @launch kernel=oproj_kernel grid=(256,1,1) block=(256,1,1) lds=147456")
    out.append('.amdgcn_target "amdgcn-amd-amdhsa--gfx950"')
    out.append(".text")
    out.append(".globl attn_kernel")
    out.append(".p2align 8")
    out.append(".type attn_kernel,@function")
    gen_attn()
    L.append(".globl oproj_kernel")
    L.append(".p2align 8")
    L.append(".type oproj_kernel,@function")
    gen_oproj()
    out += L
    out.append('.section .rodata,"a"')
    out.append(".p2align 6")
    out.append(""".amdhsa_kernel attn_kernel
  .amdhsa_next_free_vgpr 256
  .amdhsa_next_free_sgpr 64
  .amdhsa_accum_offset 256
  .amdhsa_group_segment_fixed_size 0
  .amdhsa_kernarg_size 104
  .amdhsa_user_sgpr_count 2
  .amdhsa_user_sgpr_kernarg_segment_ptr 1
  .amdhsa_system_sgpr_workgroup_id_x 1
.end_amdhsa_kernel
.p2align 6
.amdhsa_kernel oproj_kernel
  .amdhsa_next_free_vgpr 328
  .amdhsa_next_free_sgpr 64
  .amdhsa_accum_offset 256
  .amdhsa_group_segment_fixed_size 0
  .amdhsa_kernarg_size 104
  .amdhsa_user_sgpr_count 2
  .amdhsa_user_sgpr_kernarg_segment_ptr 1
  .amdhsa_system_sgpr_workgroup_id_x 1
.end_amdhsa_kernel""")
    open(OUT, "w").write("\n".join(out) + "\n")


if __name__ == "__main__":
    main()
```

```python
import sys, os
NOCOMP = int(os.environ.get("NOCOMP", "0"))

NAME = "concat_heads__mha_block_cached__mha_block_cached__near_ridge"
OUT = f"cdna_kernels/{NAME}.s"

L = []
INSM = [0]


K2X = os.environ.get("K2X", "")


def e(s=""):
    if K2X == "noW" and s.startswith("buffer_load_dwordx4") and s.endswith("lds"):
        s = "s_nop 0"
    if K2X == "noO" and s.startswith("buffer_load_dwordx4") and "s[12:15], s44" in s:
        s = "s_nop 0"
    if K2X and s.startswith("s_waitcnt vmcnt(") and not s.startswith("s_waitcnt vmcnt(0)"):
        n = int(s[16:s.index(")")])
        s = f"s_waitcnt vmcnt({n // 17 * (8 if K2X == 'noW' else 9)})"
    if NOCOMP & 1 and s.startswith("v_mfma"):
        return
    if NOCOMP & 2 and s.startswith("ds_read"):
        return
    if NOCOMP & 4 and INSM[0] and s.startswith("v_"):
        return
    L.append("    " + s if s and not s.endswith(":") else s)


def v(i, n=1):
    return f"v{i}" if n == 1 else f"v[{i}:{i + n - 1}]"


def s(i, n=1):
    return f"s{i}" if n == 1 else f"s[{i}:{i + n - 1}]"


SLOT = 16384
NSLOT = int(os.environ.get("NSLOT", "5"))
OUT = os.environ.get("OUT", OUT)
VMW = 4 * (NSLOT - 2)
NT = " nt" if os.environ.get("NT", "1") == "1" else ""
ONLY = os.environ.get("ONLY", "")
import struct


def f32bits(x):
    return struct.unpack("<I", struct.pack("<f", x))[0]


def gen_attn():
    SK, SV, SW, SX, SO = 8, 12, 16, 20, 24
    sPTR = 28
    sWS = 36
    sH, sB, sBLK = 38, 39, 40
    sRD, sWR, sWAVE = 41, 42, 43
    sKOFF, sVOFF, sWOFF = 44, 45, 46
    sCNT = 47
    sC = 48
    sD0, sD1 = 49, 51
    sW = 50
    sTO = 52
    sXOFF = 53
    sKS, sVS = 54, 55
    vTRA = 1
    vOK = 5
    vOV = 9
    vT0, vT1, vT2, vT3 = 10, 11, 12, 13
    vLANE = 14
    vM, vLs, vAL, vMC = 15, 16, 17, 18
    vU0, vU1, vU2, vU3 = 19, 20, 21, 22
    vOO = 23
    vACC = 24
    vQ = 88
    vS = [120, 152]
    vP = 184
    vKF = 200
    NKF = 4
    vFR = 216
    NFR = 4
    vKA = 232
    vNM = 240
    vDW = 247
    sFLAG = 95
    THR = 8.0
    vR = 120
    vX = 184
    vOW = 200
    vOX = 204
    vXA = 208

    STAMP = int(os.environ.get("STAMP", "0"))
    PRIO = int(os.environ.get("PRIO", "0"))
    nst = [0]

    def stamp(real=False):
        if not STAMP:
            return
        r = 56 + 2 * nst[0]
        nst[0] += 1
        assert r + 1 < 100
        e(f"{'s_memrealtime' if real else 's_memtime'} {s(r, 2)}")
        e("s_waitcnt lgkmcnt(0)")

    vmq = []
    lgq = []

    def vm_wait(tag):
        idx = max([i for i, t in enumerate(vmq) if t == tag], default=-1)
        if idx < 0:
            return
        n = len(vmq) - 1 - idx
        e(f"s_waitcnt vmcnt({n})")
        del vmq[:idx + 1]

    def lg_wait(tag):
        idx = max([i for i, t in enumerate(lgq) if t == tag], default=-1)
        if idx < 0:
            return
        n = len(lgq) - 1 - idx
        assert n <= 15
        e(f"s_waitcnt lgkmcnt({n})")
        del lgq[:idx + 1]

    def lg_all():
        if lgq:
            e("s_waitcnt lgkmcnt(0)")
            del lgq[:]

    e("attn_kernel:")
    e("s_cmp_ge_u32 s2, 512")
    e("s_cbranch_scc1 L_attn_end")
    stamp(True)
    stamp()
    MAP = int(os.environ.get("MAP", "1"))
    if MAP == 0:
        e(f"s_lshr_b32 {s(sBLK)}, s2, 8")
        e(f"s_and_b32 {s(sH)}, s2, 31")
        e(f"s_bfe_u32 {s(sB)}, s2, 0x30005")
    else:
        e(f"s_bfe_u32 {s(sBLK)}, s2, 0x10002")
        e(f"s_and_b32 s3, s2, 3")
        e(f"s_bfe_u32 s4, s2, 0x30003")
        e(f"s_lshl_b32 s3, s3, 3")
        e(f"s_or_b32 {s(sH)}, s3, s4")
        e(f"s_lshr_b32 {s(sB)}, s2, 6")
    e(f"s_mul_i32 s3, {s(sBLK)}, 40")
    e("s_add_u32 s4, s0, s3")
    e("s_addc_u32 s5, s1, 0")
    e(f"s_load_dwordx8 {s(sPTR, 8)}, s[4:5], 0")
    e(f"s_load_dwordx2 {s(sWS, 2)}, s[0:1], 96")
    e(f"s_load_dwordx2 s[96:97], s[0:1], 88")
    if PRIO:
        e(f"s_cmp_lt_u32 s2, 256")
        e("s_cbranch_scc0 L_attn_noprio")
        e(f"s_setprio {PRIO}")
        e("L_attn_noprio:")
    e(f"v_and_b32 {v(vLANE)}, 63, v0")
    e(f"v_lshrrev_b32 {v(vT0)}, 6, v0")
    e("s_nop 0")
    e(f"v_readfirstlane_b32 {s(sW)}, {v(vT0)}")
    e(f"s_lshl_b32 {s(sWAVE)}, {s(sW)}, 12")
    e(f"v_lshlrev_b32 {v(vDW)}, 12, {v(vT0)}")
    e(f"v_lshl_add_u32 {v(vDW)}, {v(vLANE)}, 4, {v(vDW)}")
    e(f"v_lshrrev_b32 {v(vT1)}, 4, {v(vLANE)}")
    e(f"v_and_b32 {v(vT2)}, 15, {v(vLANE)}")
    e(f"v_lshl_add_u32 {v(vT3)}, {v(vT0)}, 4, {v(vT1)}")
    e(f"v_lshlrev_b32 {v(vOV)}, 2, {v(vT1)}")
    e(f"v_xor_b32 {v(vOV)}, {v(vOV)}, {v(vT2)}")
    e(f"v_lshlrev_b32 {v(vOV)}, 4, {v(vOV)}")
    for n in range(4):
        e(f"v_add_u32 {v(vOW + n)}, {4 * n}, {v(vT3)}")
        e(f"v_lshl_add_u32 {v(vOW + n)}, {v(vOW + n)}, 13, {v(vOV)}")
        if n:
            e(f"v_subrev_u32 {v(vOW + n)}, {1024 * n}, {v(vOW + n)}")
    e(f"v_lshl_add_u32 {v(vOV)}, {v(vT3)}, 8, {v(vOV)}")
    for n in range(4):
        e(f"v_add_u32 {v(vOK + n)}, {4 * n}, {v(vT1)}")
        e(f"v_xor_b32 {v(vOK + n)}, {v(vOK + n)}, {v(vT2)}")
        e(f"v_lshlrev_b32 {v(vOK + n)}, 4, {v(vOK + n)}")
        e(f"v_lshl_add_u32 {v(vOK + n)}, {v(vT3)}, 8, {v(vOK + n)}")
    e(f"v_lshrrev_b32 {v(vT1)}, 3, {v(vLANE)}")
    e(f"v_lshl_add_u32 {v(vT1)}, {v(vT0)}, 5, {v(vT1)}")
    e(f"v_mul_u32_u24 {v(vT1)}, 1152, {v(vT1)}")
    e(f"v_lshrrev_b32 {v(vT2)}, 4, {v(vLANE)}")
    e(f"v_and_b32 {v(vT3)}, 7, {v(vLANE)}")
    for n in range(4):
        e(f"v_add_u32 {v(vOX + n)}, {4 * n}, {v(vT2)}")
        e(f"v_and_b32 {v(vOX + n)}, 7, {v(vOX + n)}")
        e(f"v_xor_b32 {v(vOX + n)}, {v(vOX + n)}, {v(vT3)}")
        e(f"v_lshl_add_u32 {v(vOX + n)}, {v(vOX + n)}, 4, {v(vT1)}")
        e(f"v_add_u32 {v(vOX + n)}, {8 * 1152 * n - 1024 * n}, {v(vOX + n)}")
    e(f"v_and_b32 {v(vT1)}, 31, {v(vLANE)}")
    e(f"v_bfe_u32 {v(vT2)}, {v(vLANE)}, 1, 3")
    e(f"v_lshrrev_b32 {v(vT3)}, 5, {v(vLANE)}")
    e(f"v_xor_b32 {v(vT2)}, {v(vT2)}, {v(vT3)}")
    e(f"v_lshl_add_u32 {v(vT1)}, {v(vT0)}, 5, {v(vT1)}")
    e(f"v_lshlrev_b32 {v(vT1)}, 7, {v(vT1)}")
    for u in range(4):
        e(f"v_xor_b32 {v(vT3)}, {2 * u}, {v(vT2)}")
        e(f"v_lshl_add_u32 {v(vXA + u)}, {v(vT3)}, 4, {v(vT1)}")

    def trbase(sigma, slot):
        e(f"v_lshrrev_b32 {v(vT0)}, 5, {v(vLANE)}")
        e(f"v_bfe_u32 {v(vT1)}, {v(vLANE)}, 2, 2")
        e(f"v_lshl_add_u32 {v(vT0)}, {v(vT0)}, 3, {v(vT1)}")
        e(f"v_lshlrev_b32 {v(vT0)}, 8, {v(vT0)}")
        e(f"v_bfe_u32 {v(vT2)}, {v(vLANE)}, 4, 1")
        e(f"v_lshl_add_u32 {v(vT0)}, {v(vT2)}, 5, {v(vT0)}")
        if sigma:
            e(f"v_and_b32 {v(vT2)}, 1, {v(vLANE)}")
            e(f"v_bfe_u32 {v(vT3)}, {v(vLANE)}, 1, 1")
        else:
            e(f"v_bfe_u32 {v(vT2)}, {v(vLANE)}, 1, 1")
            e(f"v_and_b32 {v(vT3)}, 1, {v(vLANE)}")
        e(f"v_lshl_add_u32 {v(vT0)}, {v(vT2)}, 4, {v(vT0)}")
        e(f"v_lshl_add_u32 {v(vT0)}, {v(vT3)}, 3, {v(vT0)}")
        e(f"v_add_u32 {v(vT0)}, {slot * SLOT}, {v(vT0)}")
        for D in range(4):
            e(f"v_xor_b32 {v(vT2)}, {D}, {v(vT1)}")
            e(f"v_lshl_add_u32 {v(vTRA + D)}, {v(vT2)}, 6, {v(vT0)}")

    trbase(True, 1)

    e("s_waitcnt lgkmcnt(0)")
    e(f"s_lshl_b32 s3, {s(sB)}, 5")
    e(f"s_add_u32 s3, s3, {s(sH)}")
    e("s_lshl_b32 s3, s3, 18")
    for (S, p) in ((SK, sPTR + 2), (SV, sPTR + 4)):
        e(f"s_add_u32 {s(S)}, {s(p)}, s3")
        e(f"s_addc_u32 {s(S + 1)}, {s(p + 1)}, 0")
        e(f"s_mov_b32 {s(S + 2)}, 262144")
        e(f"s_mov_b32 {s(S + 3)}, 0x20000")
    e(f"s_mul_i32 s3, {s(sB)}, 147456")
    e(f"s_add_u32 {s(SX)}, {s(sPTR)}, s3")
    e(f"s_addc_u32 {s(SX + 1)}, {s(sPTR + 1)}, 0")
    e(f"s_mov_b32 {s(SX + 2)}, 147456")
    e(f"s_mov_b32 {s(SX + 3)}, 0x20000")
    e(f"s_lshl_b32 s3, {s(sH)}, 8")
    e(f"s_add_u32 {s(SW)}, {s(sPTR + 6)}, s3")
    e(f"s_addc_u32 {s(SW + 1)}, {s(sPTR + 7)}, 0")
    e(f"s_sub_u32 {s(SW + 2)}, {576 * 8192}, s3")
    e(f"s_mov_b32 {s(SW + 3)}, 0x20000")
    e(f"s_lshl_b32 s3, {s(sBLK)}, 3")
    e(f"s_add_u32 s3, s3, {s(sB)}")
    e("s_lshl_b32 s3, s3, 20")
    e(f"s_lshl_b32 s4, {s(sH)}, 12")
    e("s_add_u32 s3, s3, s4")
    e(f"s_add_u32 {s(SO)}, {s(sWS)}, s3")
    e(f"s_addc_u32 {s(SO + 1)}, {s(sWS + 1)}, 0")
    e(f"s_sub_u32 {s(SO + 2)}, {1 << 20}, s4")
    e(f"s_mov_b32 {s(SO + 3)}, 0x20000")
    e(f"s_mov_b32 {s(sC)}, {f32bits(128 ** -0.5 * 1.4426950408889634):#x}")
    e("s_mov_b32 s98, 256")
    e("s_mov_b32 s99, 0x20000")
    e(f"s_mov_b32 {s(sWR)}, 0")
    e(f"s_mov_b32 {s(sKOFF)}, 0")
    e(f"s_mov_b32 {s(sVOFF)}, 0")
    QROT = int(os.environ.get("QROT", "1"))
    if QROT:
        if MAP == 0:
            e(f"s_lshr_b32 s3, {s(sH)}, 3")
            e("s_lshl_b32 s3, s3, 1")
        else:
            e(f"s_and_b32 s3, {s(sH)}, 7")
        e(f"s_add_u32 s3, s3, {s(sB)}")
        e("s_cmp_ge_u32 s3, 9")
        e("s_cselect_b32 s4, 9, 0")
        e("s_sub_u32 s3, s3, s4")
        e(f"s_lshl_b32 {s(sWOFF)}, s3, 19")
        e(f"s_lshl_b32 {s(sXOFF)}, s3, 7")
    else:
        e(f"s_mov_b32 {s(sWOFF)}, 0")
        e(f"s_mov_b32 {s(sXOFF)}, 0")

    def adv_wr():
        e(f"s_add_u32 {s(sWR)}, {s(sWR)}, {SLOT}")
        e(f"s_cmp_eq_u32 {s(sWR)}, {SLOT * NSLOT}")
        e(f"s_cselect_b32 {s(sWR)}, 0, {s(sWR)}")

    def dma_parts(kind, tag):
        g = []
        first = [f"s_add_u32 m0, {s(sWR)}, {s(sWAVE)}",
                 f"s_add_u32 {s(sWR)}, {s(sWR)}, {SLOT}"]
        for n in range(4):
            if kind == "W":
                i = f"buffer_load_dwordx4 {v(vOW + n)}, {s(SW, 4)}, {s(sWOFF)} offen offset:{1024 * n} lds"
            elif kind == "X":
                i = f"buffer_load_dwordx4 {v(vOX + n)}, {s(SX, 4)}, {s(sXOFF)} offen offset:{1024 * n} lds"
            elif kind == "K":
                i = f"buffer_load_dwordx4 {v(vOK + n)}, {s(SK, 4)}, {s(sKOFF)} offen offset:{1024 * n}{NT} lds"
            else:
                i = f"buffer_load_dwordx4 {v(vOV)}, {s(SV, 4)}, {s(sVOFF)} offen offset:{1024 * n}{NT} lds"
            g.append((first if n == 0 else []) + [i])
        so, inc = {"W": (sWOFF, 64 * 8192), "X": (sXOFF, 128), "K": (sKOFF, SLOT), "V": (sVOFF, SLOT)}[kind]
        g[-1] += [f"s_add_u32 {s(so)}, {s(so)}, {inc}",
                  f"s_cmp_eq_u32 {s(sWR)}, {SLOT * NSLOT}",
                  f"s_cselect_b32 {s(sWR)}, 0, {s(sWR)}"]
        if kind in "XW":
            g[-1] += [f"s_cmp_eq_u32 {s(so)}, {9 * inc}",
                      f"s_cselect_b32 {s(so)}, 0, {s(so)}"]
        return g

    def emit_group(g, tag):
        for i in g:
            e(i)
            if i.startswith("buffer_load"):
                vmq.append(tag)

    def dma(kind, tag):
        for g in dma_parts(kind, tag):
            emit_group(g, tag)

    def rload(i, kind):
        for n in range(4):
            r = vR + 16 * i + 4 * n
            if kind == "K":
                e(f"buffer_load_dwordx4 {v(r, 4)}, {v(vOK + n)}, {s(SK, 4)}, {s(sKOFF)} offen offset:{1024 * n}{NT}")
            else:
                e(f"buffer_load_dwordx4 {v(r, 4)}, {v(vOV)}, {s(SV, 4)}, {s(sVOFF)} offen offset:{1024 * n}{NT}")
            vmq.append(f"R{i}")
        so = sKOFF if kind == "K" else sVOFF
        e(f"s_add_u32 {s(so)}, {s(so)}, {SLOT}")

    def rdump(i):
        vm_wait(f"R{i}")
        e(f"v_add_u32 {v(vT0)}, {s(sWR)}, {v(vDW)}")
        adv_wr()
        for n in range(4):
            e(f"ds_write_b128 {v(vT0)}, {v(vR + 16 * i + 4 * n, 4)} offset:{1024 * n}")
            lgq.append("dump")

    RK = ["K", "K", "V", "K"]

    def tr_rd(f, nfr=NFR):
        u, D = f >> 2, f & 3
        r = vFR + 4 * (f % nfr)
        e(f"ds_read_b64_tr_b16 {v(r, 2)}, {v(vTRA + D)} offset:{4096 * u}")
        e(f"ds_read_b64_tr_b16 {v(r + 2, 2)}, {v(vTRA + D)} offset:{4096 * u + 1024}")
        lgq.extend([f"F{f}", f"F{f}"])

    def qphase(RSCHED):
        useR = RSCHED is not None
        seq = ["X", "W"] * 9 + (["R0", "R1", "R2", "R3"] if useR else RK)
        RSCHED = RSCHED or {}

        def issue(n):
            k = seq[n]
            if k[0] == "R":
                rdump(int(k[1]))
            else:
                dma(k, f"T{n}")

        for i in RSCHED.get(-2, []):
            rload(i, RK[i])
        for n in range(5):
            issue(n)
        for i in RSCHED.get(-1, []):
            rload(i, RK[i])
        for q in range(9):
            vm_wait(f"T{2 * q + 1}")
            lg_all()
            e("s_barrier")
            stamp()
            for u in range(4):
                e(f"ds_read_b128 {v(vX + 4 * u, 4)}, {v(vXA + u)}")
                lgq.append(f"X{u}")
            for f in range(NFR - 1):
                tr_rd(f)
            if q >= 1:
                issue(2 * q + 3)
                issue(2 * q + 4)
            for i in RSCHED.get(q, []):
                rload(i, RK[i])
            dx = ((2 * q + 2) % 5 - (2 * q) % 5) * SLOT
            for f in range(16):
                u, D = f >> 2, f & 3
                lg_wait(f"F{f}")
                r = vFR + 4 * (f % NFR)
                c = "0" if (q == 0 and u == 0) else v(vACC + 16 * D, 16)
                e(f"v_mfma_f32_32x32x16_bf16 {v(vACC + 16 * D, 16)}, {v(r, 4)}, {v(vX + 4 * u, 4)}, {c}")
                if f + NFR - 1 < 16:
                    tr_rd(f + NFR - 1)
                if f == 0 and q < 8:
                    for u2 in range(4):
                        e(f"v_add_u32 {v(vXA + u2)}, {dx & 0xffffffff:#x}, {v(vXA + u2)}")
            if q < 8:
                dw = ((2 * q + 3) % 5 - (2 * q + 1) % 5) * SLOT
                for D in range(4):
                    e(f"v_add_u32 {v(vTRA + D)}, {dw & 0xffffffff:#x}, {v(vTRA + D)}")
        vm_wait("T18")
        lg_all()
        e("s_barrier")
        stamp()
        issue(21)
        lg_all()
        del vmq[:]

    RA = eval(os.environ.get("RA", "None"))
    RB = eval(os.environ.get("RB", "{-2:[0,1,2,3]}"))
    e(f"s_cmp_lt_u32 s2, 256")
    e("s_cbranch_scc0 L_attn_qb")
    n0 = nst[0]
    qphase(RA)
    e("s_branch L_attn_qdone")
    e("L_attn_qb:")
    nst[0] = n0
    qphase(RB)
    e("L_attn_qdone:")
    trbase(False, 20 % 5)
    e(f"v_and_b32 {v(vT0)}, 0x13, {v(vLANE)}")
    e(f"v_bfe_u32 {v(vT1)}, {v(vLANE)}, 2, 1")
    e(f"v_lshl_or_b32 {v(vT0)}, {v(vT1)}, 3, {v(vT0)}")
    e(f"v_bfe_u32 {v(vT1)}, {v(vLANE)}, 3, 1")
    e(f"v_lshl_or_b32 {v(vT0)}, {v(vT1)}, 2, {v(vT0)}")
    e(f"v_and_b32 {v(vT1)}, 15, {v(vT0)}")
    e(f"v_lshrrev_b32 {v(vT2)}, 5, {v(vLANE)}")
    e(f"v_xor_b32 {v(vT1)}, {v(vT1)}, {v(vT2)}")
    e(f"v_lshlrev_b32 {v(vT0)}, 8, {v(vT0)}")
    e(f"v_add_u32 {v(vT0)}, {(18 % 5) * SLOT}, {v(vT0)}")
    for t in range(8):
        e(f"v_xor_b32 {v(vT2)}, {2 * t}, {v(vT1)}")
        e(f"v_lshl_add_u32 {v(vKA + t)}, {v(vT2)}, 4, {v(vT0)}")
    e(f"v_bfe_u32 {v(vT0)}, {v(vLANE)}, 4, 1")
    e(f"v_lshl_add_u32 {v(vT0)}, {s(sW)}, 1, {v(vT0)}")
    e(f"v_lshlrev_b32 {v(vT0)}, 17, {v(vT0)}")
    e(f"v_and_b32 {v(vT1)}, 15, {v(vLANE)}")
    e(f"v_lshrrev_b32 {v(vT2)}, 5, {v(vLANE)}")
    e(f"v_lshl_add_u32 {v(vT1)}, {v(vT2)}, 4, {v(vT1)}")
    e(f"v_lshl_add_u32 {v(vOO)}, {v(vT1)}, 4, {v(vT0)}")
    for i in range(64):
        e(f"v_mul_f32 {v(vACC + i)}, {s(sC)}, {v(vACC + i)}")
    for i in range(32):
        e(f"v_cvt_pk_bf16_f32 {v(vQ + i)}, {v(vACC + 2 * i)}, {v(vACC + 2 * i + 1)}")
    for i in range(64):
        e(f"v_mov_b32 {v(vACC + i)}, 0")
    e(f"s_mov_b32 {s(sFLAG)}, 0")
    e(f"s_mov_b32 {s(sC)}, {f32bits(THR):#x}")
    e(f"v_mov_b32 {v(vLs)}, 0")
    e(f"s_mov_b32 {s(sCNT)}, 0")
    e(f"s_mov_b32 {s(sKS)}, {(18 % 5) * SLOT}")
    e(f"s_mov_b32 {s(sVS)}, {(20 % 5) * SLOT}")
    lg_all()

    def k_rd(f):
        kb, t = f >> 3, f & 7
        e(f"ds_read_b128 {v(vKF + 4 * (f % NKF), 4)}, {v(vKA + t)} offset:{8192 * kb}")
        lgq.append(f"K{f}")

    def qk_slot(f, S, first=False):
        kb, t = f >> 3, f & 7
        lg_wait(f"K{f}")
        c = ("0" if first else v(vNM, 16)) if t == 0 else v(S + 16 * kb, 16)
        e(f"v_mfma_f32_32x32x16_bf16 {v(S + 16 * kb, 16)}, {v(vKF + 4 * (f % NKF), 4)}, {v(vQ + 4 * t, 4)}, {c}")
        if f + NKF - 1 < 16:
            k_rd(f + NKF - 1)

    slow = []

    def sm1(S, lab):
        a = [f"v_max3_f32 {v(vU0)}, {v(S + 0)}, {v(S + 1)}, {v(S + 2)}",
             f"v_max3_f32 {v(vU1)}, {v(S + 3)}, {v(S + 4)}, {v(S + 5)}"]
        for k, i in enumerate(range(6, 16, 2)):
            u = vU0 if k % 2 == 0 else vU1
            a.append(f"v_max3_f32 {v(u)}, {v(u)}, {v(S + i)}, {v(S + i + 1)}")
        b = []
        for k, i in enumerate(range(16, 32, 2)):
            u = vU1 if k % 2 == 0 else vU0
            b.append(f"v_max3_f32 {v(u)}, {v(u)}, {v(S + i)}, {v(S + i + 1)}")
        b += [f"v_max_f32 {v(vU0)}, {v(vU0)}, {v(vU1)}",
              f"v_mov_b32 {v(vU1)}, {v(vU0)}",
              "s_nop 1",
              f"v_permlane32_swap_b32 {v(vU0)}, {v(vU1)}",
              f"v_max_f32 {v(vU0)}, {v(vU0)}, {v(vU1)}"]
        if lab is None:
            for i in range(32):
                b.append(f"v_sub_f32 {v(S + i)}, {v(S + i)}, {v(vU0)}")
            for i in range(16):
                b.append(f"v_sub_f32 {v(vNM + i)}, 0, {v(vU0)}")
            return a, b
        b += [f"v_cmp_lt_f32 vcc, {s(sC)}, {v(vU0)}",
              f"s_cbranch_vccnz L_slow_{lab}",
              f"L_back_{lab}:"]
        slow.append(f"L_slow_{lab}:")
        slow.append(f"v_max_f32 {v(vU0)}, 0, {v(vU0)}")
        slow.append(f"v_sub_f32 {v(vAL)}, 0, {v(vU0)}")
        slow.append(f"v_exp_f32 {v(vAL)}, {v(vAL)}")
        for i in range(32):
            slow.append(f"v_sub_f32 {v(S + i)}, {v(S + i)}, {v(vU0)}")
        for i in range(16):
            slow.append(f"v_sub_f32 {v(vNM + i)}, {v(vNM + i)}, {v(vU0)}")
        slow.append(f"s_mov_b32 {s(sFLAG)}, 1")
        slow.append(f"s_branch L_back_{lab}")
        return a, b

    def rs_check(lab):
        e(f"s_cmp_lg_u32 {s(sFLAG)}, 0")
        e(f"s_cbranch_scc1 L_rs_{lab}")
        e(f"L_rsback_{lab}:")
        slow.append(f"L_rs_{lab}:")
        slow.append(f"v_mul_f32 {v(vLs)}, {v(vLs)}, {v(vAL)}")
        for i in range(64):
            slow.append(f"v_mul_f32 {v(vACC + i)}, {v(vACC + i)}, {v(vAL)}")
        slow.append(f"s_mov_b32 {s(sFLAG)}, 0")
        slow.append(f"s_branch L_rsback_{lab}")

    NEXP2 = int(os.environ.get("NEXP2", "20"))

    def exps(S, lo, hi):
        return [f"v_exp_f32 {v(S + i)}, {v(S + i)}" for i in range(lo, hi)]

    def sm2_rest(S):
        r = exps(S, NEXP2, 32)
        r += [f"v_add_f32 {v(vU0)}, {v(S + 0)}, {v(S + 1)}",
              f"v_add_f32 {v(vU1)}, {v(S + 2)}, {v(S + 3)}",
              f"v_add_f32 {v(vU2)}, {v(S + 4)}, {v(S + 5)}",
              f"v_add_f32 {v(vU3)}, {v(S + 6)}, {v(S + 7)}"]
        for i in range(8, 32, 4):
            r += [f"v_add_f32 {v(vU0)}, {v(vU0)}, {v(S + i)}",
                  f"v_add_f32 {v(vU1)}, {v(vU1)}, {v(S + i + 1)}",
                  f"v_add_f32 {v(vU2)}, {v(vU2)}, {v(S + i + 2)}",
                  f"v_add_f32 {v(vU3)}, {v(vU3)}, {v(S + i + 3)}"]
        for i in range(16):
            r.append(f"v_cvt_pk_bf16_f32 {v(vP + i)}, {v(S + 2 * i)}, {v(S + 2 * i + 1)}")
        r += [f"v_add_f32 {v(vU0)}, {v(vU0)}, {v(vU1)}",
              f"v_add_f32 {v(vU2)}, {v(vU2)}, {v(vU3)}",
              f"v_add_f32 {v(vLs)}, {v(vLs)}, {v(vU0)}",
              f"v_add_f32 {v(vLs)}, {v(vLs)}, {v(vU2)}"]
        return r

    def cost(i):
        if i.startswith("v_exp"):
            return 2
        if i.endswith(":"):
            return 0
        return 1

    def spread(lst, nslots, lead=0):
        tot = sum(cost(i) for i in lst) - lead
        out = [[] for _ in range(nslots + 1)]
        acc = 0
        k = 0
        for i in lst:
            if k == 0 and acc + cost(i) > lead:
                k = 1
                acc = 0
            if k >= 1:
                while k < nslots and acc + cost(i) / 2 > tot * k / nslots:
                    k += 1
            out[k].append(i)
            acc += cost(i)
        return out

    def adv_slot(sreg, sdel):
        e(f"s_add_u32 {s(sdel)}, {s(sreg)}, {2 * SLOT}")
        e(f"s_cmp_ge_u32 {s(sdel)}, {SLOT * NSLOT}")
        e(f"s_cselect_b32 {s(sTO)}, {SLOT * NSLOT}, 0")
        e(f"s_sub_u32 {s(sdel)}, {s(sdel)}, {s(sTO)}")
        e(f"s_sub_u32 {s(sTO)}, {s(sdel)}, {s(sreg)}")
        e(f"s_mov_b32 {s(sreg)}, {s(sdel)}")
        e(f"s_mov_b32 {s(sdel)}, {s(sTO)}")

    for f in range(NKF - 1):
        k_rd(f)
    for f in range(16):
        qk_slot(f, vS[0], True)
    for t in range(8):
        e(f"v_add_u32 {v(vKA + t)}, {SLOT}, {v(vKA + t)}")
    e(f"s_mov_b32 {s(sKS)}, {(19 % 5) * SLOT}")
    a, b = sm1(vS[0], None)
    e("s_nop 3")
    for i in a + b + exps(vS[0], 0, NEXP2):
        e(i)
    stamp()
    assert not lgq
    vm_state = list(vmq)
    if STAMP:
        e("s_mov_b32 s94, 0")
        e("v_mov_b32 v15, 0")

    e("L_attn_loop:")
    for par in range(2):
        Sc, Sn = vS[par], vS[1 - par]
        if STAMP:
            e("s_memtime s[92:93]")
            e("s_waitcnt lgkmcnt(0)")
            e(f"v_cmp_eq_u32 vcc, s94, {v(vLANE)}")
            e("v_mov_b32 v18, s92")
            e("s_nop 1")
            e("v_cndmask_b32 v15, v15, v18, vcc")
            e("s_add_u32 s94, s94, 1")
        e("s_waitcnt vmcnt(4)")
        e("s_barrier")
        if STAMP:
            e("s_memtime s[92:93]")
            e("s_waitcnt lgkmcnt(0)")
            e(f"v_cmp_eq_u32 vcc, s94, {v(vLANE)}")
            e("v_mov_b32 v18, s92")
            e("s_nop 1")
            e("v_cndmask_b32 v15, v15, v18, vcc")
            e("s_add_u32 s94, s94, 1")
        for f in range(NKF - 1):
            k_rd(f)
        dparts = dma_parts("V", "x") + dma_parts("K", "x")
        ch = spread(sm2_rest(Sc), 16, lead=12)
        for i in ch[0]:
            e(i)
        adv_slot(sKS, sD0)
        adv_slot(sVS, sD1)
        for f in range(16):
            qk_slot(f, Sn)
            if f == 2:
                rs_check(par)
            if f % 2 == 0:
                for i in dparts[f // 2]:
                    e(i)
            if f >= 16 - (NFR - 1):
                tr_rd(f - (16 - (NFR - 1)))
            if f == 12:
                for t in range(8):
                    e(f"v_add_u32 {v(vKA + t)}, {s(sD0)}, {v(vKA + t)}")
            for i in ch[f + 1]:
                e(i)
        a, b = sm1(Sn, par)
        ch = spread(b + exps(Sn, 0, NEXP2), 14)
        for f in range(16):
            u, D = f >> 2, f & 3
            lg_wait(f"F{f}")
            r = vFR + 4 * (f % NFR)
            e(f"v_mfma_f32_32x32x16_bf16 {v(vACC + 16 * D, 16)}, {v(r, 4)}, {v(vP + 4 * u, 4)}, {v(vACC + 16 * D, 16)}")
            if f + NFR - 1 < 16:
                tr_rd(f + NFR - 1)
            if f == 0:
                for i in a:
                    e(i)
            if f == 16 - NFR:
                for D2 in range(4):
                    e(f"v_add_u32 {v(vTRA + D2)}, {s(sD1)}, {v(vTRA + D2)}")
            if f >= 2:
                for i in ch[f - 1]:
                    e(i)
        assert not lgq
    e(f"s_add_u32 {s(sCNT)}, {s(sCNT)}, 1")
    e(f"s_cmp_lt_u32 {s(sCNT)}, 8")
    e("s_cbranch_scc1 L_attn_loop")

    stamp()
    e(f"s_add_u32 s3, s2, {s(sW)}")
    e("s_cmp_eq_u32 s3, 0")
    e("s_cbranch_scc0 L_attn_nononce")
    e("s_memrealtime s[6:7]")
    e(f"s_add_u32 s4, {s(sWS)}, {56 << 20}")
    e(f"s_addc_u32 s5, {s(sWS + 1)}, 0")
    e("s_waitcnt lgkmcnt(0)")
    e(f"v_mov_b32 {v(vU0)}, s6")
    e(f"v_mov_b32 {v(vU1)}, 0")
    e("s_mov_b32 s6, 4")
    e("s_mov_b32 s7, 0x20000")
    e(f"buffer_store_dword {v(vU0)}, {v(vU1)}, s[4:7], 0 offen")
    e("L_attn_nononce:")
    e(f"v_mov_b32 {v(vU1)}, {v(vLs)}")
    e("s_nop 1")
    e(f"v_permlane32_swap_b32 {v(vLs)}, {v(vU1)}")
    e(f"v_add_f32 {v(vLs)}, {v(vLs)}, {v(vU1)}")
    e(f"v_rcp_f32 {v(vLs)}, {v(vLs)}")
    e("s_nop 7")
    e("s_nop 3")
    for i in range(64):
        e(f"v_mul_f32 {v(vACC + i)}, {v(vACC + i)}, {v(vLs)}")
    for D in range(4):
        for p in range(2):
            r = vS[0] + 8 * D + 4 * p
            a = vACC + 16 * D + 4 * p
            e(f"v_cvt_pk_bf16_f32 {v(r)}, {v(a)}, {v(a + 1)}")
            e(f"v_cvt_pk_bf16_f32 {v(r + 1)}, {v(a + 2)}, {v(a + 3)}")
            e(f"v_cvt_pk_bf16_f32 {v(r + 2)}, {v(a + 8)}, {v(a + 9)}")
            e(f"v_cvt_pk_bf16_f32 {v(r + 3)}, {v(a + 10)}, {v(a + 11)}")
            e(f"buffer_store_dwordx4 {v(r, 4)}, {v(vOO)}, {s(SO, 4)}, 0 offen offset:{1024 * D + 512 * p}")
    e("s_waitcnt vmcnt(0)")
    if STAMP:
        stamp()
        stamp(True)
        e(f"s_lshl_b32 s3, s2, 10")
        e(f"s_lshl_b32 s4, {s(sW)}, 8")
        e(f"s_add_u32 s3, s3, s4")
        e(f"s_add_u32 s3, s3, {64 << 20}")
        e(f"s_add_u32 {s(SO)}, {s(sWS)}, s3")
        e(f"s_addc_u32 {s(SO + 1)}, {s(sWS + 1)}, 0")
        e(f"s_mov_b32 {s(SO + 2)}, 256")
        e("v_mov_b32 v1, 0")
        for i in range(nst[0]):
            e(f"v_mov_b32 v2, {s(56 + 2 * i)}")
            e(f"v_mov_b32 v3, {s(57 + 2 * i)}")
            e(f"buffer_store_dwordx2 v[2:3], v1, {s(SO, 4)}, 0 offen offset:{8 * i}")
            e("s_waitcnt vmcnt(0)")
        print("attn nstamps", nst[0])
        e(f"s_add_u32 {s(SO)}, {s(SO)}, {1 << 20}")
        e(f"s_addc_u32 {s(SO + 1)}, {s(SO + 1)}, 0")
        e(f"v_lshlrev_b32 v1, 2, {v(vLANE)}")
        e(f"buffer_store_dword v15, v1, {s(SO, 4)}, 0 offen")
        e("s_waitcnt vmcnt(0)")
    e("L_attn_end:")
    e("s_endpgm")
    for i in slow:
        e(i)


def gen_oproj():
    SW, SOo, SP, SD, SOUT = 8, 12, 16, 20, 24
    sBLK, sSP, sB, sCT, sW = 28, 29, 30, 31, 32
    sWO, sWS, sOUT, sDBG = 34, 36, 38, 40
    sM0, sWOFF, sOOFF, sT = 42, 43, 44, 45
    sTILE = 46
    sNON = 47
    sROT, sOOFF2 = 48, 49
    STG = 128 * 288
    NS = 4
    vLANE, vT0, vT1, vT2, vT3 = 1, 2, 3, 4, 5
    vOW = 6
    vOO = 15
    vTRB = 17
    vTRA = 18
    vPO = 19
    vACC = 24
    vFR = 96
    NFR = 8
    vOB = 128

    STAMP = int(os.environ.get("STAMP2", "0"))
    nst = [0]

    def stamp(real=False):
        if not STAMP:
            return
        r = 56 + 2 * nst[0]
        nst[0] += 1
        assert r + 1 < 100
        e(f"{'s_memrealtime' if real else 's_memtime'} {s(r, 2)}")
        e("s_waitcnt lgkmcnt(0)")

    e("oproj_kernel:")
    e("s_cmp_ge_u32 s2, 256")
    e("s_cbranch_scc1 L_op_end")
    stamp(True)
    stamp()
    e(f"s_and_b32 {s(sSP)}, s2, 3")
    e(f"s_bfe_u32 {s(sBLK)}, s2, 0x10002")
    e(f"s_bfe_u32 {s(sCT)}, s2, 0x20003")
    e(f"s_lshr_b32 {s(sB)}, s2, 5")
    e(f"s_mul_i32 s3, {s(sBLK)}, 40")
    e("s_add_u32 s4, s0, s3")
    e("s_addc_u32 s5, s1, 0")
    e(f"s_load_dwordx2 {s(sWO, 2)}, s[4:5], 32")
    e(f"s_load_dwordx2 {s(sOUT, 2)}, s[0:1], 80")
    e(f"s_load_dwordx2 {s(sDBG, 2)}, s[0:1], 88")
    e(f"s_load_dwordx2 {s(sWS, 2)}, s[0:1], 96")
    e(f"v_and_b32 {v(vLANE)}, 63, v0")
    e(f"v_lshrrev_b32 {v(vT0)}, 6, v0")
    e("s_nop 0")
    e(f"v_readfirstlane_b32 {s(sW)}, {v(vT0)}")
    e(f"v_mul_u32_u24 {v(vT0)}, 576, {v(vT0)}")
    e(f"v_add_u32 {v(vT0)}, {v(vT0)}, {v(vLANE)}")
    for n in range(9):
        e(f"v_add_u32 {v(vT1)}, {64 * n}, {v(vT0)}")
        e(f"v_mul_u32_u24 {v(vT2)}, 3641, {v(vT1)}")
        e(f"v_lshrrev_b32 {v(vT2)}, 16, {v(vT2)}")
        e(f"v_mul_u32_u24 {v(vT3)}, 18, {v(vT2)}")
        e(f"v_sub_u32 {v(vT3)}, {v(vT1)}, {v(vT3)}")
        e(f"v_mul_u32_u24 {v(vT2)}, 1152, {v(vT2)}")
        e(f"v_lshl_add_u32 {v(vOW + n)}, {v(vT3)}, 4, {v(vT2)}")
        if n % 4:
            e(f"v_subrev_u32 {v(vOW + n)}, {1024 * (n % 4)}, {v(vOW + n)}")
    e(f"v_lshrrev_b32 {v(vT0)}, 2, {v(vLANE)}")
    e(f"v_mul_u32_u24 {v(vT0)}, 288, {v(vT0)}")
    e(f"v_and_b32 {v(vT1)}, 3, {v(vLANE)}")
    e(f"v_lshl_add_u32 {v(vTRB)}, {v(vT1)}, 3, {v(vT0)}")
    e(f"s_lshl_b32 s3, {s(sW)}, 18")
    e(f"s_lshl_b32 s4, {s(sSP)}, 15")
    e("s_add_u32 s3, s3, s4")
    e(f"v_lshlrev_b32 {v(vT0)}, 4, {v(vLANE)}")
    e(f"v_add_u32 {v(vOO)}, s3, {v(vT0)}")
    e(f"v_add_u32 {v(vOO + 1)}, 0x20000, {v(vOO)}")
    e("s_waitcnt lgkmcnt(0)")
    e(f"s_mul_i32 s3, {s(sSP)}, {1024 * 1152}")
    e(f"s_mul_i32 s4, {s(sCT)}, 288")
    e("s_add_u32 s3, s3, s4")
    e(f"s_add_u32 {s(SW)}, {s(sWO)}, s3")
    e(f"s_addc_u32 {s(SW + 1)}, {s(sWO + 1)}, 0")
    e(f"s_sub_u32 {s(SW + 2)}, {4096 * 1152}, s3")
    e(f"s_mov_b32 {s(SW + 3)}, 0x20000")
    e(f"s_lshl_b32 s3, {s(sBLK)}, 3")
    e(f"s_add_u32 s3, s3, {s(sB)}")
    e(f"s_lshl_b32 {s(sTILE)}, s3, 2")
    e(f"s_add_u32 {s(sTILE)}, {s(sTILE)}, {s(sCT)}")
    e("s_lshl_b32 s3, s3, 20")
    e(f"s_add_u32 {s(SOo)}, {s(sWS)}, s3")
    e(f"s_addc_u32 {s(SOo + 1)}, {s(sWS + 1)}, 0")
    e(f"s_mov_b32 {s(SOo + 2)}, {1 << 20}")
    e(f"s_mov_b32 {s(SOo + 3)}, 0x20000")
    e(f"s_mul_i32 s3, {s(sTILE)}, {16 * 18432}")
    e(f"s_add_u32 s3, s3, {16 << 20}")
    e(f"s_add_u32 {s(SP)}, {s(sWS)}, s3")
    e(f"s_addc_u32 {s(SP + 1)}, {s(sWS + 1)}, 0")
    e(f"s_mov_b32 {s(SP + 2)}, {16 * 18432}")
    e(f"s_mov_b32 {s(SP + 3)}, 0x20000")
    e(f"s_mov_b32 {s(SD)}, {s(sDBG)}")
    e(f"s_mov_b32 {s(SD + 1)}, {s(sDBG + 1)}")
    e(f"s_mov_b32 {s(SD + 2)}, 256")
    e(f"s_mov_b32 {s(SD + 3)}, 0x20000")
    e(f"s_lshl_b32 s3, {s(sB)}, 7")
    e(f"s_lshl_b32 s4, {s(sW)}, 5")
    e("s_add_u32 s3, s3, s4")
    e("s_mul_i32 s3, s3, 2304")
    e(f"s_mul_i32 s4, {s(sBLK)}, 1152")
    e("s_add_u32 s3, s3, s4")
    e(f"s_mul_i32 s4, {s(sCT)}, 288")
    e("s_add_u32 s3, s3, s4")
    e(f"s_add_u32 {s(SOUT)}, {s(sOUT)}, s3")
    e(f"s_addc_u32 {s(SOUT + 1)}, {s(sOUT + 1)}, 0")
    e(f"s_sub_u32 {s(SOUT + 2)}, {1024 * 2304}, s3")
    e(f"s_mov_b32 {s(SOUT + 3)}, 0x20000")
    e(f"s_mul_i32 {s(sM0)}, {s(sW)}, 9216")
    if int(os.environ.get("K2ROT", "1")):
        e(f"s_lshl_b32 {s(sROT)}, {s(sCT)}, 1")
        e(f"s_add_u32 {s(sROT)}, {s(sROT)}, {s(sB)}")
    else:
        e(f"s_mov_b32 {s(sROT)}, 0")
    e(f"s_add_u32 s4, {s(sWS)}, {56 << 20}")
    e(f"s_addc_u32 s5, {s(sWS + 1)}, 0")
    e(f"s_load_dword {s(sNON)}, s[4:5], 0")
    e("s_waitcnt lgkmcnt(0)")

    def issue_parts(st):
        slot = (st % NS) * STG
        g = []
        for n in range(9):
            x = []
            if n == 0:
                x.append(f"s_add_u32 {s(sOOFF2)}, {s(sROT)}, {st}")
                x.append(f"s_and_b32 {s(sOOFF2)}, {s(sOOFF2)}, 7")
                x.append(f"s_mul_i32 {s(sWOFF)}, {s(sOOFF2)}, {128 * 1152}")
            if n % 4 == 0:
                x.append(f"s_add_u32 m0, {s(sM0)}, {slot + 1024 * n}")
                x.append("s_nop 0")
            x.append(f"buffer_load_dwordx4 {v(vOW + n)}, {s(SW, 4)}, {s(sWOFF)} offen offset:{1024 * (n % 4)} lds")
            g.append(x)
        for ks in range(4):
            for rh in range(2):
                x = []
                if ks == 0 and rh == 0:
                    x.append(f"s_lshl_b32 {s(sOOFF)}, {s(sOOFF2)}, 12")
                r = vOB + 32 * (st % 4) + 8 * ks + 4 * rh
                x.append(f"buffer_load_dwordx4 {v(r, 4)}, {v(vOO + rh)}, {s(SOo, 4)}, {s(sOOFF)} offen offset:{1024 * ks}")
                g.append(x)
        return g

    PRE = int(os.environ.get("K2PRE", "1"))
    for st in range(PRE):
        for g in issue_parts(st):
            for i in g:
                e(i)
    for st in range(8):
        e(f"s_waitcnt vmcnt({17 * min(2, 7 - st) if st else 17 * (PRE - 1)})")
        e("s_barrier")
        stamp()
        parts = issue_parts(st + 3) if st + 3 < 8 else []
        if st == 0:
            for st2 in range(PRE, 3):
                for g in issue_parts(st2):
                    for i in g:
                        e(i)
        e(f"v_add_u32 {v(vTRA)}, {(st % NS) * STG}, {v(vTRB)}")

        def rd(f):
            ks, nb = f // 9, f % 9
            r = vFR + 4 * (f % NFR)
            e(f"ds_read_b64_tr_b16 {v(r, 2)}, {v(vTRA)} offset:{32 * ks * 288 + 32 * nb}")
            e(f"ds_read_b64_tr_b16 {v(r + 2, 2)}, {v(vTRA)} offset:{(32 * ks + 16) * 288 + 32 * nb}")

        for f in range(NFR - 1):
            rd(f)
        for f in range(36):
            ks, nb = f // 9, f % 9
            inflight = min(NFR - 1, 36 - f)
            e(f"s_waitcnt lgkmcnt({2 * (inflight - 1)})")
            r = vFR + 4 * (f % NFR)
            for rh in range(2):
                a = vACC + 8 * nb + 4 * rh
                c = "0" if (st == 0 and ks == 0) else v(a, 4)
                ob = vOB + 32 * (st % 4) + 8 * ks + 4 * rh
                e(f"v_mfma_f32_16x16x32_bf16 {v(a, 4)}, {v(r, 4)}, {v(ob, 4)}, {c}")
            if f + NFR - 1 < 36:
                rd(f + NFR - 1)
            if f % 2 == 0 and f // 2 < len(parts):
                for i in parts[f // 2]:
                    e(i)
    stamp()
    vNB = 6
    vCK = 10
    e(f"s_mul_i32 s3, {s(sW)}, 18432")
    e(f"v_lshlrev_b32 {v(vT0)}, 4, {v(vLANE)}")
    e(f"v_add_u32 {v(vPO)}, s3, {v(vT0)}")
    for k in range(4):
        e(f"s_bfe_u32 s3, {s(sNON)}, {(8 << 16) | (8 * k):#x}")
        e(f"v_mov_b32 {v(vNB + k)}, s3")
    e("s_movk_i32 s5, 0xff")
    e(f"v_and_b32 {v(vT1)}, 15, {v(vLANE)}")
    e(f"v_mul_u32_u24 {v(vT1)}, 2304, {v(vT1)}")
    e(f"v_lshrrev_b32 {v(vT2)}, 4, {v(vLANE)}")
    e(f"v_lshl_add_u32 {v(vT1)}, {v(vT2)}, 3, {v(vT1)}")
    e(f"v_add_u32 {v(vT2)}, {16 * 2304}, {v(vT1)}")
    e(f"s_mov_b32 {s(sT)}, 0")
    for d in range(1, 4):
        e(f"s_cmp_eq_u32 {s(sSP)}, {d}")
        e(f"s_cbranch_scc1 L_op_red{d}")
    n0 = nst[0]
    for d in range(4):
        nst[0] = n0
        e(f"L_op_red{d}:")
        own = [f for f in range(18) if f % 4 == d]
        for f in range(18):
            if f % 4 == d:
                continue
            for k in range(4):
                e(f"v_bfi_b32 {v(vACC + 4 * f + k)}, s5, {v(vNB + k)}, {v(vACC + 4 * f + k)}")
            e(f"s_mov_b32 s3, {(d * 4 * 18 + f) * 1024}")
            e(f"buffer_store_dwordx4 {v(vACC + 4 * f, 4)}, {v(vPO)}, {s(SP, 4)}, s3 offen sc1")
        stamp()
        e(f"L_op_retry{d}:")
        regs = []
        for k in range(1, 4):
            src = (d + k) & 3
            for i, f in enumerate(own):
                r = 96 + 4 * len(regs)
                regs.append((r, f))
                e(f"s_mov_b32 s3, {(src * 4 * 18 + f) * 1024}")
                e(f"buffer_load_dwordx4 {v(r, 4)}, {v(vPO)}, {s(SP, 4)}, s3 offen sc1")
        e(f"v_mov_b32 {v(vCK)}, 0")
        e(f"s_add_u32 {s(sT)}, {s(sT)}, 1")
        e("s_waitcnt vmcnt(0)")
        for r, f in regs:
            for k in range(4):
                e(f"v_xor_b32 {v(vT3)}, {v(r + k)}, {v(vNB + k)}")
                e(f"v_and_or_b32 {v(vCK)}, {v(vT3)}, s5, {v(vCK)}")
        e(f"v_cmp_ne_u32 vcc, 0, {v(vCK)}")
        e(f"s_cbranch_vccz L_op_ok{d}")
        e(f"s_cmp_lt_u32 {s(sT)}, 0x20000")
        e(f"s_cbranch_scc1 L_op_retry{d}")
        e(f"L_op_ok{d}:")
        stamp()
        for r, f in regs:
            for k in range(4):
                e(f"v_add_f32 {v(vACC + 4 * f + k)}, {v(vACC + 4 * f + k)}, {v(r + k)}")
        for f in own:
            nb, rh = f >> 1, f & 1
            a = vACC + 4 * f
            e(f"v_cvt_pk_bf16_f32 {v(a)}, {v(a)}, {v(a + 1)}")
            e(f"v_cvt_pk_bf16_f32 {v(a + 1)}, {v(a + 2)}, {v(a + 3)}")
            e(f"buffer_store_dwordx2 {v(a, 2)}, {v(vT1 if rh == 0 else vT2)}, {s(SOUT, 4)}, 0 offen offset:{32 * nb}")
        if d < 3:
            e("s_branch L_op_fin")
    e("L_op_fin:")
    if STAMP:
        e("s_waitcnt vmcnt(0)")
        stamp()
        stamp(True)
        e(f"s_cmp_eq_u32 {s(sW)}, 0")
        e("s_cbranch_scc0 L_op_end")
        e(f"s_lshl_b32 s3, s2, 10")
        e(f"s_add_u32 s3, s3, {64 << 20}")
        e(f"s_add_u32 {s(SOo)}, {s(sWS)}, s3")
        e(f"s_addc_u32 {s(SOo + 1)}, {s(sWS + 1)}, 0")
        e(f"s_mov_b32 {s(SOo + 2)}, 256")
        e("v_mov_b32 v1, 0")
        for i in range(nst[0]):
            e(f"v_mov_b32 v2, {s(56 + 2 * i)}")
            e(f"v_mov_b32 v3, {s(57 + 2 * i)}")
            e(f"buffer_store_dwordx2 v[2:3], v1, {s(SOo, 4)}, 0 offen offset:{8 * i}")
            e("s_waitcnt vmcnt(0)")
        print("nstamps", nst[0])
    e("L_op_end:")
    e("s_endpgm")


def main():
    hdr = open(f"cdna_kernels/{NAME}.s.ref").read().split("\n")
    head = [x for x in hdr if x.startswith(";") and "@launch" not in x and "Override" not in x and "grid=ceil" not in x]
    out = head[:]
    if ONLY != "oproj":
        out.append("; @launch kernel=attn_kernel grid=(512,1,1) block=(256,1,1) lds=%d" % (SLOT * NSLOT))
    if ONLY != "attn":
        out.append("; @launch kernel=oproj_kernel grid=(256,1,1) block=(256,1,1) lds=147456")
    out.append('.amdgcn_target "amdgcn-amd-amdhsa--gfx950"')
    out.append(".text")
    out.append(".globl attn_kernel")
    out.append(".p2align 8")
    out.append(".type attn_kernel,@function")
    gen_attn()
    L.append(".globl oproj_kernel")
    L.append(".p2align 8")
    L.append(".type oproj_kernel,@function")
    gen_oproj()
    out += L
    out.append('.section .rodata,"a"')
    out.append(".p2align 6")
    out.append(""".amdhsa_kernel attn_kernel
  .amdhsa_next_free_vgpr 256
  .amdhsa_next_free_sgpr 102
  .amdhsa_accum_offset 256
  .amdhsa_group_segment_fixed_size 0
  .amdhsa_kernarg_size 104
  .amdhsa_user_sgpr_count 2
  .amdhsa_user_sgpr_kernarg_segment_ptr 1
  .amdhsa_system_sgpr_workgroup_id_x 1
.end_amdhsa_kernel
.p2align 6
.amdhsa_kernel oproj_kernel
  .amdhsa_next_free_vgpr 256
  .amdhsa_next_free_sgpr 102
  .amdhsa_accum_offset 256
  .amdhsa_group_segment_fixed_size 0
  .amdhsa_kernarg_size 104
  .amdhsa_user_sgpr_count 2
  .amdhsa_user_sgpr_kernarg_segment_ptr 1
  .amdhsa_system_sgpr_workgroup_id_x 1
.end_amdhsa_kernel""")
    open(OUT, "w").write("\n".join(out) + "\n")


if __name__ == "__main__":
    main()
```

```python
import sys, os
NOCOMP = int(os.environ.get("NOCOMP", "0"))

NAME = "concat_heads__mha_block_cached__mha_block_cached__near_ridge"
OUT = f"cdna_kernels/{NAME}.s"

L = []
INSM = [0]


def e(s=""):
    if NOCOMP & 1 and s.startswith("v_mfma"):
        return
    if NOCOMP & 2 and s.startswith("ds_read"):
        return
    if NOCOMP & 4 and INSM[0] and s.startswith("v_"):
        return
    L.append("    " + s if s and not s.endswith(":") else s)


def v(i, n=1):
    return f"v{i}" if n == 1 else f"v[{i}:{i + n - 1}]"


def s(i, n=1):
    return f"s{i}" if n == 1 else f"s[{i}:{i + n - 1}]"


SLOT = 16384
NSLOT = int(os.environ.get("NSLOT", "5"))
OUT = os.environ.get("OUT", OUT)
VMW = 4 * (NSLOT - 2)
NT = " nt" if os.environ.get("NT", "0") == "1" else ""
ONLY = os.environ.get("ONLY", "")
import struct


def f32bits(x):
    return struct.unpack("<I", struct.pack("<f", x))[0]


def gen_attn():
    SK, SV, SW, SX, SO = 8, 12, 16, 20, 24
    sPTR = 28
    sWS = 36
    sH, sB, sBLK = 38, 39, 40
    sRD, sWR, sWAVE = 41, 42, 43
    sKOFF, sVOFF, sWOFF = 44, 45, 46
    sCNT = 47
    sC = 48
    sT = 49
    sW = 50
    sROT = 51
    sTO = 52
    sXOFF = 53
    vTID = 0
    vTRB = 1
    vTRA = 5
    vOW = 9
    vOK = 13
    vOV = 17
    vT0, vT1, vT2, vT3 = 18, 19, 20, 21
    vLANE = 22
    vOX = 128
    vXB = 132
    vXA = 136
    vACC = 24
    vFR = 88
    NFR = 6
    vX = 112
    vQ = 112
    vS = 144
    vP = 176
    vKF = 192
    NKF = 8
    vKB = 224
    vKA = 232
    vM, vLs, vAL, vMC = 240, 241, 242, 243
    vU0, vU1, vU2, vU3 = 244, 245, 246, 247
    vOO = 248

    STAMP = int(os.environ.get("STAMP", "0"))
    nst = [0]

    def stamp(real=False):
        if not STAMP:
            return
        r = 56 + 2 * nst[0]
        nst[0] += 1
        assert r + 1 < 100
        e(f"{'s_memrealtime' if real else 's_memtime'} {s(r, 2)}")
        e("s_waitcnt lgkmcnt(0)")

    e("attn_kernel:")
    e("s_cmp_ge_u32 s2, 512")
    e("s_cbranch_scc1 L_attn_end")
    stamp(True)
    stamp()
    MAP = os.environ.get("MAP", "0")
    e(f"s_lshr_b32 {s(sBLK)}, s2, 8")
    if MAP == "0":
        e("s_and_b32 s3, s2, 31")
        e(f"s_mov_b32 {s(sH)}, s3")
        e(f"s_bfe_u32 {s(sB)}, s2, 0x30005")
    elif MAP == "1":
        e(f"s_bfe_u32 s3, s2, 0x20001")
        e(f"s_bfe_u32 s4, s2, 0x30003")
        e(f"s_lshl_b32 s3, s3, 3")
        e(f"s_or_b32 {s(sH)}, s3, s4")
        e(f"s_and_b32 s3, s2, 1")
        e(f"s_bfe_u32 s4, s2, 0x20006")
        e(f"s_lshl_b32 s3, s3, 2")
        e(f"s_or_b32 {s(sB)}, s3, s4")
    elif MAP == "2":
        e(f"s_and_b32 {s(sB)}, s2, 7")
        e(f"s_bfe_u32 {s(sH)}, s2, 0x50003")
    elif MAP == "3":
        e(f"s_and_b32 s3, s2, 7")
        e(f"s_bfe_u32 s4, s2, 0x20003")
        e(f"s_lshl_b32 s3, s3, 2")
        e(f"s_or_b32 {s(sH)}, s3, s4")
        e(f"s_bfe_u32 {s(sB)}, s2, 0x30005")
    e(f"s_mul_i32 s3, {s(sBLK)}, 40")
    e("s_add_u32 s4, s0, s3")
    e("s_addc_u32 s5, s1, 0")
    e(f"s_load_dwordx8 {s(sPTR, 8)}, s[4:5], 0")
    e(f"s_load_dwordx2 {s(sWS, 2)}, s[0:1], 96")
    e(f"v_and_b32 {v(vLANE)}, 63, v0")
    e(f"v_lshrrev_b32 {v(vT0)}, 6, v0")
    e("s_nop 0")
    e(f"v_readfirstlane_b32 {s(sW)}, {v(vT0)}")
    e(f"s_lshl_b32 {s(sWAVE)}, {s(sW)}, 12")
    e(f"v_lshrrev_b32 {v(vT1)}, 4, {v(vLANE)}")
    e(f"v_and_b32 {v(vT2)}, 15, {v(vLANE)}")
    e(f"v_lshl_add_u32 {v(vT3)}, {v(vT0)}, 4, {v(vT1)}")
    e(f"v_lshlrev_b32 {v(vOV)}, 2, {v(vT1)}")
    e(f"v_xor_b32 {v(vOV)}, {v(vOV)}, {v(vT2)}")
    e(f"v_lshlrev_b32 {v(vOV)}, 4, {v(vOV)}")
    for n in range(4):
        e(f"v_add_u32 {v(vOW + n)}, {4 * n}, {v(vT3)}")
        e(f"v_lshl_add_u32 {v(vOW + n)}, {v(vOW + n)}, 13, {v(vOV)}")
        if n:
            e(f"v_subrev_u32 {v(vOW + n)}, {1024 * n}, {v(vOW + n)}")
    e(f"v_lshl_add_u32 {v(vOV)}, {v(vT3)}, 8, {v(vOV)}")
    for n in range(4):
        e(f"v_add_u32 {v(vOK + n)}, {4 * n}, {v(vT1)}")
        e(f"v_xor_b32 {v(vOK + n)}, {v(vOK + n)}, {v(vT2)}")
        e(f"v_lshlrev_b32 {v(vOK + n)}, 4, {v(vOK + n)}")
        e(f"v_lshl_add_u32 {v(vOK + n)}, {v(vT3)}, 8, {v(vOK + n)}")
    e(f"v_lshrrev_b32 {v(vT1)}, 3, {v(vLANE)}")
    e(f"v_lshl_add_u32 {v(vT1)}, {v(vT0)}, 5, {v(vT1)}")
    e(f"v_mul_u32_u24 {v(vT1)}, 1152, {v(vT1)}")
    e(f"v_lshrrev_b32 {v(vT2)}, 4, {v(vLANE)}")
    e(f"v_and_b32 {v(vT3)}, 7, {v(vLANE)}")
    for n in range(4):
        e(f"v_add_u32 {v(vOX + n)}, {4 * n}, {v(vT2)}")
        e(f"v_and_b32 {v(vOX + n)}, 7, {v(vOX + n)}")
        e(f"v_xor_b32 {v(vOX + n)}, {v(vOX + n)}, {v(vT3)}")
        e(f"v_lshl_add_u32 {v(vOX + n)}, {v(vOX + n)}, 4, {v(vT1)}")
        e(f"v_add_u32 {v(vOX + n)}, {8 * 1152 * n - 1024 * n}, {v(vOX + n)}")
    e(f"v_and_b32 {v(vT1)}, 31, {v(vLANE)}")
    e(f"v_bfe_u32 {v(vT2)}, {v(vLANE)}, 1, 3")
    e(f"v_lshrrev_b32 {v(vT3)}, 5, {v(vLANE)}")
    e(f"v_xor_b32 {v(vT2)}, {v(vT2)}, {v(vT3)}")
    e(f"v_lshl_add_u32 {v(vT1)}, {v(vT0)}, 5, {v(vT1)}")
    e(f"v_lshlrev_b32 {v(vT1)}, 7, {v(vT1)}")
    for u in range(4):
        e(f"v_xor_b32 {v(vT3)}, {2 * u}, {v(vT2)}")
        e(f"v_lshl_add_u32 {v(vXB + u)}, {v(vT3)}, 4, {v(vT1)}")

    def trbase(sigma):
        e(f"v_lshrrev_b32 {v(vT0)}, 5, {v(vLANE)}")
        e(f"v_bfe_u32 {v(vT1)}, {v(vLANE)}, 2, 2")
        e(f"v_lshl_add_u32 {v(vT0)}, {v(vT0)}, 3, {v(vT1)}")
        e(f"v_lshlrev_b32 {v(vT0)}, 8, {v(vT0)}")
        e(f"v_bfe_u32 {v(vT2)}, {v(vLANE)}, 4, 1")
        e(f"v_lshl_add_u32 {v(vT0)}, {v(vT2)}, 5, {v(vT0)}")
        if sigma:
            e(f"v_and_b32 {v(vT2)}, 1, {v(vLANE)}")
            e(f"v_bfe_u32 {v(vT3)}, {v(vLANE)}, 1, 1")
        else:
            e(f"v_bfe_u32 {v(vT2)}, {v(vLANE)}, 1, 1")
            e(f"v_and_b32 {v(vT3)}, 1, {v(vLANE)}")
        e(f"v_lshl_add_u32 {v(vT0)}, {v(vT2)}, 4, {v(vT0)}")
        e(f"v_lshl_add_u32 {v(vT0)}, {v(vT3)}, 3, {v(vT0)}")
        for D in range(4):
            e(f"v_xor_b32 {v(vT2)}, {D}, {v(vT1)}")
            e(f"v_lshl_add_u32 {v(vTRB + D)}, {v(vT2)}, 6, {v(vT0)}")

    trbase(True)

    e("s_waitcnt lgkmcnt(0)")
    e(f"s_lshl_b32 s3, {s(sB)}, 5")
    e(f"s_add_u32 s3, s3, {s(sH)}")
    e("s_lshl_b32 s3, s3, 18")
    for (S, p) in ((SK, sPTR + 2), (SV, sPTR + 4)):
        e(f"s_add_u32 {s(S)}, {s(p)}, s3")
        e(f"s_addc_u32 {s(S + 1)}, {s(p + 1)}, 0")
        e(f"s_mov_b32 {s(S + 2)}, 262144")
        e(f"s_mov_b32 {s(S + 3)}, 0x20000")
    e(f"s_mul_i32 s3, {s(sB)}, 147456")
    e(f"s_add_u32 {s(SX)}, {s(sPTR)}, s3")
    e(f"s_addc_u32 {s(SX + 1)}, {s(sPTR + 1)}, 0")
    e(f"s_mov_b32 {s(SX + 2)}, 147456")
    e(f"s_mov_b32 {s(SX + 3)}, 0x20000")
    e(f"s_lshl_b32 s3, {s(sH)}, 8")
    e(f"s_add_u32 {s(SW)}, {s(sPTR + 6)}, s3")
    e(f"s_addc_u32 {s(SW + 1)}, {s(sPTR + 7)}, 0")
    e(f"s_sub_u32 {s(SW + 2)}, {576 * 8192}, s3")
    e(f"s_mov_b32 {s(SW + 3)}, 0x20000")
    e(f"s_lshl_b32 s3, {s(sBLK)}, 3")
    e(f"s_add_u32 s3, s3, {s(sB)}")
    e("s_lshl_b32 s3, s3, 20")
    e(f"s_lshl_b32 s4, {s(sH)}, 12")
    e("s_add_u32 s3, s3, s4")
    e(f"s_add_u32 {s(SO)}, {s(sWS)}, s3")
    e(f"s_addc_u32 {s(SO + 1)}, {s(sWS + 1)}, 0")
    e(f"s_sub_u32 {s(SO + 2)}, {1 << 20}, s4")
    e(f"s_mov_b32 {s(SO + 3)}, 0x20000")
    e(f"s_mov_b32 {s(sC)}, {f32bits(128 ** -0.5 * 1.4426950408889634):#x}")
    e(f"s_mov_b32 {s(sRD)}, 0")
    ROT = os.environ.get("ROT", "0")
    if ROT == "0":
        e(f"s_mov_b32 {s(sROT)}, 0")
    elif ROT == "1":
        e(f"s_bfe_u32 {s(sROT)}, s2, 0x40003")
        e(f"s_lshl_b32 {s(sROT)}, {s(sROT)}, 14")
    elif ROT == "2":
        e(f"s_and_b32 {s(sROT)}, s2, 15")
        e(f"s_lshl_b32 {s(sROT)}, {s(sROT)}, 14")
    elif ROT == "3":
        e(f"s_lshr_b32 {s(sROT)}, s2, 4")
        e(f"s_xor_b32 {s(sROT)}, {s(sROT)}, s2")
        e(f"s_lshr_b32 {s(sTO)}, s2, 8")
        e(f"s_xor_b32 {s(sROT)}, {s(sROT)}, {s(sTO)}")
        e(f"s_and_b32 {s(sROT)}, {s(sROT)}, 15")
        e(f"s_lshl_b32 {s(sROT)}, {s(sROT)}, 14")
    e(f"s_mov_b32 {s(sWR)}, 0")
    e(f"s_mov_b32 {s(sKOFF)}, 0")
    e(f"s_mov_b32 {s(sVOFF)}, 0")
    e(f"s_mov_b32 {s(sWOFF)}, 0")
    e(f"s_mov_b32 {s(sXOFF)}, 0")

    def dma(kind):
        e(f"s_add_u32 m0, {s(sWR)}, {s(sWAVE)}")
        e(f"s_add_u32 {s(sWR)}, {s(sWR)}, {SLOT}")
        if kind in "KV":
            so = sKOFF if kind == "K" else sVOFF
            e(f"s_add_u32 {s(sTO)}, {s(so)}, {s(sROT)}")
            e(f"s_and_b32 {s(sTO)}, {s(sTO)}, 0x3ffff")
            e(f"s_cmp_ge_u32 {s(so)}, 0x40000")
            e(f"s_cselect_b32 {s(sTO)}, {s(so)}, {s(sTO)}")
        for n in range(4):
            if kind == "W":
                e(f"buffer_load_dwordx4 {v(vOW + n)}, {s(SW, 4)}, {s(sWOFF)} offen offset:{1024 * n} lds")
            elif kind == "X":
                e(f"buffer_load_dwordx4 {v(vOX + n)}, {s(SX, 4)}, {s(sXOFF)} offen offset:{1024 * n} lds")
            elif kind == "K":
                e(f"buffer_load_dwordx4 {v(vOK + n)}, {s(SK, 4)}, {s(sTO)} offen offset:{1024 * n}{NT} lds")
            else:
                e(f"buffer_load_dwordx4 {v(vOV)}, {s(SV, 4)}, {s(sTO)} offen offset:{1024 * n}{NT} lds")
        if kind == "W":
            e(f"s_add_u32 {s(sWOFF)}, {s(sWOFF)}, {64 * 8192}")
        elif kind == "X":
            e(f"s_add_u32 {s(sXOFF)}, {s(sXOFF)}, 128")
        elif kind == "K":
            e(f"s_add_u32 {s(sKOFF)}, {s(sKOFF)}, {SLOT}")
        else:
            e(f"s_add_u32 {s(sVOFF)}, {s(sVOFF)}, {SLOT}")
        e(f"s_cmp_eq_u32 {s(sWR)}, {SLOT * NSLOT}")
        e(f"s_cselect_b32 {s(sWR)}, 0, {s(sWR)}")

    def adv_rd():
        e(f"s_add_u32 {s(sRD)}, {s(sRD)}, {SLOT}")
        e(f"s_cmp_eq_u32 {s(sRD)}, {SLOT * NSLOT}")
        e(f"s_cselect_b32 {s(sRD)}, 0, {s(sRD)}")

    NOQ = int(os.environ.get("NOQ", "0"))
    seq = ["X", "W"] * (0 if NOQ else 9) + ["K", "V"] * 20
    for T in range(NSLOT - 1):
        dma(seq[T])

    def tr_gemm(bfrag, first):
        for D in range(4):
            e(f"v_add_u32 {v(vTRA + D)}, {s(sRD)}, {v(vTRB + D)}")
        adv_rd()

        def rd(f):
            u, D = f >> 2, f & 3
            r = vFR + 4 * (f % NFR)
            e(f"ds_read_b64_tr_b16 {v(r, 2)}, {v(vTRA + D)} offset:{4096 * u}")
            e(f"ds_read_b64_tr_b16 {v(r + 2, 2)}, {v(vTRA + D)} offset:{4096 * u + 1024}")

        for f in range(NFR - 1):
            rd(f)
        for f in range(16):
            u, D = f >> 2, f & 3
            inflight = min(NFR - 1, 16 - f)
            e(f"s_waitcnt lgkmcnt({2 * (inflight - 1)})")
            r = vFR + 4 * (f % NFR)
            c = "0" if (first and u == 0) else v(vACC + 16 * D, 16)
            e(f"v_mfma_f32_32x32x16_bf16 {v(vACC + 16 * D, 16)}, {v(r, 4)}, {v(bfrag(u), 4)}, {c}")
            if f + NFR - 1 < 16:
                rd(f + NFR - 1)

    for T in range(0 if NOQ else 9):
        e(f"s_waitcnt vmcnt({VMW})")
        e("s_barrier")
        stamp()
        dma(seq[2 * T + NSLOT - 1])
        for u in range(4):
            e(f"v_add_u32 {v(vXA + u)}, {s(sRD)}, {v(vXB + u)}")
        adv_rd()
        for u in range(4):
            e(f"ds_read_b128 {v(vX + 4 * u, 4)}, {v(vXA + u)}")
        e(f"s_waitcnt vmcnt({VMW}) lgkmcnt(0)")
        e("s_barrier")
        dma(seq[2 * T + 1 + NSLOT - 1])
        tr_gemm(lambda u: vX + 4 * u, T == 0)

    trbase(False)
    e(f"v_and_b32 {v(vT0)}, 0x13, {v(vLANE)}")
    e(f"v_bfe_u32 {v(vT1)}, {v(vLANE)}, 2, 1")
    e(f"v_lshl_or_b32 {v(vT0)}, {v(vT1)}, 3, {v(vT0)}")
    e(f"v_bfe_u32 {v(vT1)}, {v(vLANE)}, 3, 1")
    e(f"v_lshl_or_b32 {v(vT0)}, {v(vT1)}, 2, {v(vT0)}")
    e(f"v_and_b32 {v(vT1)}, 15, {v(vT0)}")
    e(f"v_lshrrev_b32 {v(vT2)}, 5, {v(vLANE)}")
    e(f"v_xor_b32 {v(vT1)}, {v(vT1)}, {v(vT2)}")
    e(f"v_lshlrev_b32 {v(vT0)}, 8, {v(vT0)}")
    e("s_nop 4")
    for t in range(8):
        e(f"v_xor_b32 {v(vT2)}, {2 * t}, {v(vT1)}")
        e(f"v_lshl_add_u32 {v(vKB + t)}, {v(vT2)}, 4, {v(vT0)}")
    e(f"v_bfe_u32 {v(vT0)}, {v(vLANE)}, 4, 1")
    e(f"v_lshl_add_u32 {v(vT0)}, {s(sW)}, 1, {v(vT0)}")
    e(f"v_lshlrev_b32 {v(vT0)}, 17, {v(vT0)}")
    e(f"v_and_b32 {v(vT1)}, 15, {v(vLANE)}")
    e(f"v_lshrrev_b32 {v(vT2)}, 5, {v(vLANE)}")
    e(f"v_lshl_add_u32 {v(vT1)}, {v(vT2)}, 4, {v(vT1)}")
    e(f"v_lshl_add_u32 {v(vOO)}, {v(vT1)}, 4, {v(vT0)}")
    for i in range(32):
        e(f"v_cvt_pk_bf16_f32 {v(vQ + i)}, {v(vACC + 2 * i)}, {v(vACC + 2 * i + 1)}")
    for i in range(64):
        e(f"v_mov_b32 {v(vACC + i)}, 0")
    e(f"v_mov_b32 {v(vM)}, 0xff7fffff")
    e(f"v_mov_b32 {v(vLs)}, 0")
    e(f"s_mov_b32 {s(sCNT)}, 0")

    stamp()
    e("L_attn_loop:")
    e(f"s_waitcnt vmcnt({VMW})")
    e("s_barrier")
    dma("K" if (NSLOT - 1) % 2 == 0 else "V")
    for t in range(8):
        e(f"v_add_u32 {v(vKA + t)}, {s(sRD)}, {v(vKB + t)}")
    adv_rd()

    def krd(f):
        kb, t = f >> 3, f & 7
        e(f"ds_read_b128 {v(vKF + 4 * (f % NKF), 4)}, {v(vKA + t)} offset:{8192 * kb}")

    for f in range(NKF - 1):
        krd(f)
    for f in range(16):
        kb, t = f >> 3, f & 7
        inflight = min(NKF - 1, 16 - f)
        e(f"s_waitcnt lgkmcnt({inflight - 1})")
        c = "0" if t == 0 else v(vS + 16 * kb, 16)
        e(f"v_mfma_f32_32x32x16_bf16 {v(vS + 16 * kb, 16)}, {v(vKF + 4 * (f % NKF), 4)}, {v(vQ + 4 * t, 4)}, {c}")
        if f + NKF - 1 < 16:
            krd(f + NKF - 1)
    INSM[0] = 1
    e(f"v_max3_f32 {v(vU0)}, {v(vS + 0)}, {v(vS + 1)}, {v(vM)}")
    e(f"v_max3_f32 {v(vU1)}, {v(vS + 2)}, {v(vS + 3)}, {v(vS + 4)}")
    for k, i in enumerate(range(5, 15, 2)):
        u = vU0 if k % 2 == 0 else vU1
        e(f"v_max3_f32 {v(u)}, {v(u)}, {v(vS + i)}, {v(vS + i + 1)}")
    e("s_nop 7")
    for k, i in enumerate(range(15, 31, 2)):
        u = vU1 if k % 2 == 0 else vU0
        e(f"v_max3_f32 {v(u)}, {v(u)}, {v(vS + i)}, {v(vS + i + 1)}")
    e(f"v_max3_f32 {v(vU0)}, {v(vU0)}, {v(vU1)}, {v(vS + 31)}")
    e(f"v_mov_b32 {v(vU1)}, {v(vU0)}")
    e("s_nop 1")
    e(f"v_permlane32_swap_b32 {v(vU0)}, {v(vU1)}")
    e(f"v_max_f32 {v(vU0)}, {v(vU0)}, {v(vU1)}")
    e(f"v_mul_f32 {v(vMC)}, {s(sC)}, {v(vU0)}")
    e(f"v_fma_f32 {v(vAL)}, {v(vM)}, {s(sC)}, -{v(vMC)}")
    e(f"v_mov_b32 {v(vM)}, {v(vU0)}")
    e(f"v_exp_f32 {v(vAL)}, {v(vAL)}")
    for i in range(32):
        e(f"v_fma_f32 {v(vS + i)}, {v(vS + i)}, {s(sC)}, -{v(vMC)}")
    for i in range(32):
        e(f"v_exp_f32 {v(vS + i)}, {v(vS + i)}")
    e(f"v_mul_f32 {v(vLs)}, {v(vLs)}, {v(vAL)}")
    e(f"v_add_f32 {v(vU0)}, {v(vS + 0)}, {v(vS + 1)}")
    e(f"v_add_f32 {v(vU1)}, {v(vS + 2)}, {v(vS + 3)}")
    e(f"v_add_f32 {v(vU2)}, {v(vS + 4)}, {v(vS + 5)}")
    e(f"v_add_f32 {v(vU3)}, {v(vS + 6)}, {v(vS + 7)}")
    for i in range(8, 32, 4):
        e(f"v_add_f32 {v(vU0)}, {v(vU0)}, {v(vS + i)}")
        e(f"v_add_f32 {v(vU1)}, {v(vU1)}, {v(vS + i + 1)}")
        e(f"v_add_f32 {v(vU2)}, {v(vU2)}, {v(vS + i + 2)}")
        e(f"v_add_f32 {v(vU3)}, {v(vU3)}, {v(vS + i + 3)}")
    for i in range(16):
        e(f"v_cvt_pk_bf16_f32 {v(vP + i)}, {v(vS + 2 * i)}, {v(vS + 2 * i + 1)}")
    e(f"v_add_f32 {v(vU0)}, {v(vU0)}, {v(vU1)}")
    e(f"v_add_f32 {v(vU2)}, {v(vU2)}, {v(vU3)}")
    e(f"v_add_f32 {v(vLs)}, {v(vLs)}, {v(vU0)}")
    e(f"v_add_f32 {v(vLs)}, {v(vLs)}, {v(vU2)}")
    for i in range(64):
        e(f"v_mul_f32 {v(vACC + i)}, {v(vACC + i)}, {v(vAL)}")
    INSM[0] = 0
    e(f"s_waitcnt vmcnt({VMW})")
    e("s_barrier")
    dma("V" if (NSLOT - 1) % 2 == 0 else "K")
    tr_gemm(lambda u: vP + 4 * u, False)
    e(f"s_add_u32 {s(sCNT)}, {s(sCNT)}, 1")
    e(f"s_cmp_lt_u32 {s(sCNT)}, 16")
    e("s_cbranch_scc1 L_attn_loop")

    stamp()
    e(f"v_mov_b32 {v(vU1)}, {v(vLs)}")
    e("s_nop 1")
    e(f"v_permlane32_swap_b32 {v(vLs)}, {v(vU1)}")
    e(f"v_add_f32 {v(vLs)}, {v(vLs)}, {v(vU1)}")
    e(f"v_rcp_f32 {v(vLs)}, {v(vLs)}")
    e("s_nop 7")
    e("s_nop 3")
    for i in range(64):
        e(f"v_mul_f32 {v(vACC + i)}, {v(vACC + i)}, {v(vLs)}")
    for D in range(4):
        for p in range(2):
            r = vS + 8 * D + 4 * p
            a = vACC + 16 * D + 4 * p
            e(f"v_cvt_pk_bf16_f32 {v(r)}, {v(a)}, {v(a + 1)}")
            e(f"v_cvt_pk_bf16_f32 {v(r + 1)}, {v(a + 2)}, {v(a + 3)}")
            e(f"v_cvt_pk_bf16_f32 {v(r + 2)}, {v(a + 8)}, {v(a + 9)}")
            e(f"v_cvt_pk_bf16_f32 {v(r + 3)}, {v(a + 10)}, {v(a + 11)}")
            e(f"buffer_store_dwordx4 {v(r, 4)}, {v(vOO)}, {s(SO, 4)}, 0 offen offset:{1024 * D + 512 * p}")
    e("s_waitcnt vmcnt(0)")
    if STAMP:
        stamp()
        stamp(True)
        e(f"s_lshl_b32 s3, s2, 10")
        e(f"s_lshl_b32 s4, {s(sW)}, 8")
        e(f"s_add_u32 s3, s3, s4")
        e(f"s_add_u32 s3, s3, {64 << 20}")
        e(f"s_add_u32 {s(SO)}, {s(sWS)}, s3")
        e(f"s_addc_u32 {s(SO + 1)}, {s(sWS + 1)}, 0")
        e(f"s_mov_b32 {s(SO + 2)}, 256")
        e("v_mov_b32 v1, 0")
        for i in range(nst[0]):
            e(f"v_mov_b32 v2, {s(56 + 2 * i)}")
            e(f"v_mov_b32 v3, {s(57 + 2 * i)}")
            e(f"buffer_store_dwordx2 v[2:3], v1, {s(SO, 4)}, 0 offen offset:{8 * i}")
            e("s_waitcnt vmcnt(0)")
    e("L_attn_end:")
    e("s_endpgm")


def gen_oproj():
    SW, SOo, SP, SD, SOUT = 8, 12, 16, 20, 24
    sBLK, sSP, sB, sCT, sW = 28, 29, 30, 31, 32
    sWO, sWS, sOUT, sDBG = 34, 36, 38, 40
    sM0, sWOFF, sOOFF, sT = 42, 43, 44, 45
    sTILE = 46
    STG = 128 * 288
    NS = 4
    vLANE, vT0, vT1, vT2, vT3 = 1, 2, 3, 4, 5
    vOW = 6
    vOO = 15
    vTRB = 17
    vTRA = 18
    vPO = 19
    vACC = 24
    vFR = 96
    NFR = 8
    vOB = 128

    STAMP = int(os.environ.get("STAMP2", "0"))
    nst = [0]

    def stamp(real=False):
        if not STAMP:
            return
        r = 56 + 2 * nst[0]
        nst[0] += 1
        assert r + 1 < 100
        e(f"{'s_memrealtime' if real else 's_memtime'} {s(r, 2)}")
        e("s_waitcnt lgkmcnt(0)")

    e("oproj_kernel:")
    e("s_cmp_ge_u32 s2, 256")
    e("s_cbranch_scc1 L_op_end")
    stamp(True)
    stamp()
    e(f"s_and_b32 {s(sSP)}, s2, 3")
    e(f"s_bfe_u32 {s(sBLK)}, s2, 0x10002")
    e(f"s_bfe_u32 {s(sCT)}, s2, 0x20003")
    e(f"s_lshr_b32 {s(sB)}, s2, 5")
    e(f"s_mul_i32 s3, {s(sBLK)}, 40")
    e("s_add_u32 s4, s0, s3")
    e("s_addc_u32 s5, s1, 0")
    e(f"s_load_dwordx2 {s(sWO, 2)}, s[4:5], 32")
    e(f"s_load_dwordx2 {s(sOUT, 2)}, s[0:1], 80")
    e(f"s_load_dwordx2 {s(sDBG, 2)}, s[0:1], 88")
    e(f"s_load_dwordx2 {s(sWS, 2)}, s[0:1], 96")
    e(f"v_and_b32 {v(vLANE)}, 63, v0")
    e(f"v_lshrrev_b32 {v(vT0)}, 6, v0")
    e("s_nop 0")
    e(f"v_readfirstlane_b32 {s(sW)}, {v(vT0)}")
    e(f"v_mul_u32_u24 {v(vT0)}, 576, {v(vT0)}")
    e(f"v_add_u32 {v(vT0)}, {v(vT0)}, {v(vLANE)}")
    for n in range(9):
        e(f"v_add_u32 {v(vT1)}, {64 * n}, {v(vT0)}")
        e(f"v_mul_u32_u24 {v(vT2)}, 3641, {v(vT1)}")
        e(f"v_lshrrev_b32 {v(vT2)}, 16, {v(vT2)}")
        e(f"v_mul_u32_u24 {v(vT3)}, 18, {v(vT2)}")
        e(f"v_sub_u32 {v(vT3)}, {v(vT1)}, {v(vT3)}")
        e(f"v_mul_u32_u24 {v(vT2)}, 1152, {v(vT2)}")
        e(f"v_lshl_add_u32 {v(vOW + n)}, {v(vT3)}, 4, {v(vT2)}")
        if n % 4:
            e(f"v_subrev_u32 {v(vOW + n)}, {1024 * (n % 4)}, {v(vOW + n)}")
    e(f"v_lshrrev_b32 {v(vT0)}, 2, {v(vLANE)}")
    e(f"v_mul_u32_u24 {v(vT0)}, 288, {v(vT0)}")
    e(f"v_and_b32 {v(vT1)}, 3, {v(vLANE)}")
    e(f"v_lshl_add_u32 {v(vTRB)}, {v(vT1)}, 3, {v(vT0)}")
    e(f"s_lshl_b32 s3, {s(sW)}, 18")
    e(f"s_lshl_b32 s4, {s(sSP)}, 15")
    e("s_add_u32 s3, s3, s4")
    e(f"v_lshlrev_b32 {v(vT0)}, 4, {v(vLANE)}")
    e(f"v_add_u32 {v(vOO)}, s3, {v(vT0)}")
    e(f"v_add_u32 {v(vOO + 1)}, 0x20000, {v(vOO)}")
    e("s_waitcnt lgkmcnt(0)")
    e(f"s_mul_i32 s3, {s(sSP)}, {1024 * 1152}")
    e(f"s_mul_i32 s4, {s(sCT)}, 288")
    e("s_add_u32 s3, s3, s4")
    e(f"s_add_u32 {s(SW)}, {s(sWO)}, s3")
    e(f"s_addc_u32 {s(SW + 1)}, {s(sWO + 1)}, 0")
    e(f"s_sub_u32 {s(SW + 2)}, {4096 * 1152}, s3")
    e(f"s_mov_b32 {s(SW + 3)}, 0x20000")
    e(f"s_lshl_b32 s3, {s(sBLK)}, 3")
    e(f"s_add_u32 s3, s3, {s(sB)}")
    e(f"s_lshl_b32 {s(sTILE)}, s3, 2")
    e(f"s_add_u32 {s(sTILE)}, {s(sTILE)}, {s(sCT)}")
    e("s_lshl_b32 s3, s3, 20")
    e(f"s_add_u32 {s(SOo)}, {s(sWS)}, s3")
    e(f"s_addc_u32 {s(SOo + 1)}, {s(sWS + 1)}, 0")
    e(f"s_mov_b32 {s(SOo + 2)}, {1 << 20}")
    e(f"s_mov_b32 {s(SOo + 3)}, 0x20000")
    e(f"s_mul_i32 s3, {s(sTILE)}, {16 * 18432}")
    e(f"s_add_u32 s3, s3, {16 << 20}")
    e(f"s_add_u32 {s(SP)}, {s(sWS)}, s3")
    e(f"s_addc_u32 {s(SP + 1)}, {s(sWS + 1)}, 0")
    e(f"s_mov_b32 {s(SP + 2)}, {16 * 18432}")
    e(f"s_mov_b32 {s(SP + 3)}, 0x20000")
    e(f"s_mov_b32 {s(SD)}, {s(sDBG)}")
    e(f"s_mov_b32 {s(SD + 1)}, {s(sDBG + 1)}")
    e(f"s_mov_b32 {s(SD + 2)}, 256")
    e(f"s_mov_b32 {s(SD + 3)}, 0x20000")
    e(f"s_lshl_b32 s3, {s(sB)}, 7")
    e(f"s_lshl_b32 s4, {s(sSP)}, 5")
    e("s_add_u32 s3, s3, s4")
    e("s_mul_i32 s3, s3, 2304")
    e(f"s_mul_i32 s4, {s(sBLK)}, 1152")
    e("s_add_u32 s3, s3, s4")
    e(f"s_mul_i32 s4, {s(sCT)}, 288")
    e("s_add_u32 s3, s3, s4")
    e(f"s_add_u32 {s(SOUT)}, {s(sOUT)}, s3")
    e(f"s_addc_u32 {s(SOUT + 1)}, {s(sOUT + 1)}, 0")
    e(f"s_sub_u32 {s(SOUT + 2)}, {1024 * 2304}, s3")
    e(f"s_mov_b32 {s(SOUT + 3)}, 0x20000")
    e(f"s_mul_i32 {s(sM0)}, {s(sW)}, 9216")

    def issue(st):
        slot = (st % NS) * STG
        e(f"s_mov_b32 {s(sWOFF)}, {st * 128 * 1152}")
        for n in range(9):
            if n % 4 == 0:
                e(f"s_add_u32 m0, {s(sM0)}, {slot + 1024 * n}")
                e("s_nop 0")
            e(f"buffer_load_dwordx4 {v(vOW + n)}, {s(SW, 4)}, {s(sWOFF)} offen offset:{1024 * (n % 4)} lds")
        e(f"s_mov_b32 {s(sOOFF)}, {st * 4096}")
        for ks in range(4):
            for rh in range(2):
                r = vOB + 32 * (st % 4) + 8 * ks + 4 * rh
                e(f"buffer_load_dwordx4 {v(r, 4)}, {v(vOO + rh)}, {s(SOo, 4)}, {s(sOOFF)} offen offset:{1024 * ks}")

    for st in range(3):
        issue(st)
    for st in range(8):
        e(f"s_waitcnt vmcnt({17 * min(2, 7 - st)})")
        e("s_barrier")
        stamp()
        if st + 3 < 8:
            issue(st + 3)
        e(f"v_add_u32 {v(vTRA)}, {(st % NS) * STG}, {v(vTRB)}")

        def rd(f):
            ks, nb = f // 9, f % 9
            r = vFR + 4 * (f % NFR)
            e(f"ds_read_b64_tr_b16 {v(r, 2)}, {v(vTRA)} offset:{32 * ks * 288 + 32 * nb}")
            e(f"ds_read_b64_tr_b16 {v(r + 2, 2)}, {v(vTRA)} offset:{(32 * ks + 16) * 288 + 32 * nb}")

        for f in range(NFR - 1):
            rd(f)
        for f in range(36):
            ks, nb = f // 9, f % 9
            inflight = min(NFR - 1, 36 - f)
            e(f"s_waitcnt lgkmcnt({2 * (inflight - 1)})")
            r = vFR + 4 * (f % NFR)
            for rh in range(2):
                a = vACC + 8 * nb + 4 * rh
                c = "0" if (st == 0 and ks == 0) else v(a, 4)
                ob = vOB + 32 * (st % 4) + 8 * ks + 4 * rh
                e(f"v_mfma_f32_16x16x32_bf16 {v(a, 4)}, {v(r, 4)}, {v(ob, 4)}, {c}")
            if f + NFR - 1 < 36:
                rd(f + NFR - 1)
    stamp()
    e(f"s_lshl_b32 s3, {s(sW)}, 2")
    e(f"s_add_u32 s3, s3, {s(sSP)}")
    e("s_mul_i32 s3, s3, 18432")
    e(f"v_lshlrev_b32 {v(vT0)}, 4, {v(vLANE)}")
    e(f"v_add_u32 {v(vPO)}, s3, {v(vT0)}")
    e(f"v_add_u32 {v(vPO + 1)}, 4096, {v(vPO)}")
    e(f"v_add_u32 {v(vPO + 2)}, 8192, {v(vPO)}")
    e(f"v_add_u32 {v(vPO + 3)}, 12288, {v(vPO)}")
    e(f"v_add_u32 {v(vPO + 4)}, 16384, {v(vPO)}")
    e("s_nop 4")
    e(f"s_cmp_eq_u32 {s(sW)}, {s(sSP)}")
    e("s_cbranch_scc1 L_op_nostore")
    for f in range(18):
        e(f"buffer_store_dwordx4 {v(vACC + 4 * f, 4)}, {v(vPO + f // 4)}, {s(SP, 4)}, 0 offen offset:{1024 * (f % 4)} sc0 sc1")
    e("s_waitcnt vmcnt(0)")
    e("L_op_nostore:")
    e("s_barrier")
    e(f"s_cmp_eq_u32 {s(sW)}, {s(sSP)}")
    e("s_cbranch_scc0 L_op_end")
    stamp()
    e(f"s_lshl_b32 s3, {s(sTILE)}, 2")
    e(f"v_mov_b32 {v(vT0)}, s3")
    e(f"v_mov_b32 {v(vT1)}, 1")
    e("s_mov_b64 s[4:5], exec")
    e("s_mov_b64 exec, 1")
    e(f"buffer_atomic_add {v(vT1)}, {v(vT0)}, {s(SD, 4)}, 0 offen sc1")
    e("s_mov_b64 exec, s[4:5]")
    e(f"s_mov_b32 {s(sT)}, 0")
    e("L_op_poll:")
    e(f"buffer_load_dword {v(vT1)}, {v(vT0)}, {s(SD, 4)}, 0 offen sc0 sc1")
    e("s_waitcnt vmcnt(0)")
    e(f"v_readfirstlane_b32 s3, {v(vT1)}")
    e(f"s_add_u32 {s(sT)}, {s(sT)}, 1")
    e("s_cmp_ge_u32 s3, 4")
    e("s_cbranch_scc1 L_op_ready")
    e(f"s_cmp_lt_u32 {s(sT)}, 0x100000")
    e("s_cbranch_scc1 L_op_poll")
    e("L_op_ready:")
    stamp()
    e(f"v_lshlrev_b32 {v(vT0)}, 4, {v(vLANE)}")
    for k in range(1, 4):
        e(f"s_add_u32 s3, {s(sSP)}, {k}")
        e("s_and_b32 s3, s3, 3")
        e(f"s_lshl_b32 s4, {s(sSP)}, 2")
        e("s_add_u32 s3, s3, s4")
        e("s_mul_i32 s3, s3, 18432")
        for f in range(18):
            if f % 4 == 0:
                e(f"s_add_u32 s4, s3, {1024 * f}")
            dst = v(96 + 72 * (k - 1) + 4 * f, 4) if k < 3 else f"a[{4 * f}:{4 * f + 3}]"
            e(f"buffer_load_dwordx4 {dst}, {v(vT0)}, {s(SP, 4)}, s4 offen offset:{1024 * (f % 4)} sc0 sc1")
    e(f"v_and_b32 {v(vT1)}, 15, {v(vLANE)}")
    e(f"v_mul_u32_u24 {v(vT1)}, 2304, {v(vT1)}")
    e(f"v_lshrrev_b32 {v(vT2)}, 4, {v(vLANE)}")
    e(f"v_lshl_add_u32 {v(vT1)}, {v(vT2)}, 3, {v(vT1)}")
    e(f"v_add_u32 {v(vT2)}, {16 * 2304}, {v(vT1)}")
    e("s_waitcnt vmcnt(0)")
    stamp()
    for i in range(72):
        e(f"v_add_f32 {v(96 + i)}, {v(96 + i)}, {v(168 + i)}")
        e(f"v_accvgpr_read_b32 {v(168 + i)}, a{i}")
    for i in range(72):
        e(f"v_add_f32 {v(vACC + i)}, {v(vACC + i)}, {v(168 + i)}")
    for i in range(72):
        e(f"v_add_f32 {v(vACC + i)}, {v(vACC + i)}, {v(96 + i)}")
    for nb in range(9):
        for rh in range(2):
            a = vACC + 8 * nb + 4 * rh
            e(f"v_cvt_pk_bf16_f32 {v(a)}, {v(a)}, {v(a + 1)}")
            e(f"v_cvt_pk_bf16_f32 {v(a + 1)}, {v(a + 2)}, {v(a + 3)}")
            e(f"buffer_store_dwordx2 {v(a, 2)}, {v(vT1 if rh == 0 else vT2)}, {s(SOUT, 4)}, 0 offen offset:{32 * nb}")
    e("s_waitcnt vmcnt(0)")
    if STAMP:
        stamp()
        stamp(True)
        e(f"s_lshl_b32 s3, s2, 10")
        e(f"s_add_u32 s3, s3, {64 << 20}")
        e(f"s_add_u32 {s(SOo)}, {s(sWS)}, s3")
        e(f"s_addc_u32 {s(SOo + 1)}, {s(sWS + 1)}, 0")
        e(f"s_mov_b32 {s(SOo + 2)}, 256")
        e("v_mov_b32 v1, 0")
        for i in range(nst[0]):
            e(f"v_mov_b32 v2, {s(56 + 2 * i)}")
            e(f"v_mov_b32 v3, {s(57 + 2 * i)}")
            e(f"buffer_store_dwordx2 v[2:3], v1, {s(SOo, 4)}, 0 offen offset:{8 * i}")
            e("s_waitcnt vmcnt(0)")
        print("nstamps", nst[0])
    e("L_op_end:")
    e("s_endpgm")


def main():
    hdr = open(f"cdna_kernels/{NAME}.s.ref").read().split("\n")
    head = [x for x in hdr if x.startswith(";") and "@launch" not in x and "Override" not in x and "grid=ceil" not in x]
    out = head[:]
    out.append("; @launch kernel=attn_kernel grid=(512,1,1) block=(256,1,1) lds=%d" % (SLOT * NSLOT))
    if ONLY != "attn":
        out.append("; @launch kernel=oproj_kernel grid=(256,1,1) block=(256,1,1) lds=147456")
    out.append('.amdgcn_target "amdgcn-amd-amdhsa--gfx950"')
    out.append(".text")
    out.append(".globl attn_kernel")
    out.append(".p2align 8")
    out.append(".type attn_kernel,@function")
    gen_attn()
    L.append(".globl oproj_kernel")
    L.append(".p2align 8")
    L.append(".type oproj_kernel,@function")
    gen_oproj()
    out += L
    out.append('.section .rodata,"a"')
    out.append(".p2align 6")
    out.append(""".amdhsa_kernel attn_kernel
  .amdhsa_next_free_vgpr 256
  .amdhsa_next_free_sgpr 102
  .amdhsa_accum_offset 256
  .amdhsa_group_segment_fixed_size 0
  .amdhsa_kernarg_size 104
  .amdhsa_user_sgpr_count 2
  .amdhsa_user_sgpr_kernarg_segment_ptr 1
  .amdhsa_system_sgpr_workgroup_id_x 1
.end_amdhsa_kernel
.p2align 6
.amdhsa_kernel oproj_kernel
  .amdhsa_next_free_vgpr 328
  .amdhsa_next_free_sgpr 102
  .amdhsa_accum_offset 256
  .amdhsa_group_segment_fixed_size 0
  .amdhsa_kernarg_size 104
  .amdhsa_user_sgpr_count 2
  .amdhsa_user_sgpr_kernarg_segment_ptr 1
  .amdhsa_system_sgpr_workgroup_id_x 1
.end_amdhsa_kernel""")
    open(OUT, "w").write("\n".join(out) + "\n")


if __name__ == "__main__":
    main()
```

```python
import sys, os
NOCOMP = int(os.environ.get("NOCOMP", "0"))

NAME = "concat_heads__mha_block_cached__mha_block_cached__near_ridge"
OUT = f"cdna_kernels/{NAME}.s"

L = []
INSM = [0]


K2X = os.environ.get("K2X", "")


def e(s=""):
    if K2X == "noW" and s.startswith("buffer_load_dwordx4") and s.endswith("lds"):
        s = "s_nop 0"
    if K2X == "noO" and s.startswith("buffer_load_dwordx4") and "s[12:15], s44" in s:
        s = "s_nop 0"
    if K2X and s.startswith("s_waitcnt vmcnt(") and not s.startswith("s_waitcnt vmcnt(0)"):
        n = int(s[16:s.index(")")])
        s = f"s_waitcnt vmcnt({n // 17 * (8 if K2X == 'noW' else 9)})"
    if NOCOMP & 1 and s.startswith("v_mfma"):
        return
    if NOCOMP & 2 and s.startswith("ds_read"):
        return
    if NOCOMP & 4 and INSM[0] and s.startswith("v_"):
        return
    L.append("    " + s if s and not s.endswith(":") else s)


def v(i, n=1):
    return f"v{i}" if n == 1 else f"v[{i}:{i + n - 1}]"


def s(i, n=1):
    return f"s{i}" if n == 1 else f"s[{i}:{i + n - 1}]"


SLOT = 16384
NSLOT = int(os.environ.get("NSLOT", "5"))
OUT = os.environ.get("OUT", OUT)
VMW = 4 * (NSLOT - 2)
NT = " nt" if os.environ.get("NT", "1") == "1" else ""
ONLY = os.environ.get("ONLY", "")
import struct


def f32bits(x):
    return struct.unpack("<I", struct.pack("<f", x))[0]


def gen_attn():
    SK, SV, SW, SX, SO = 8, 12, 16, 20, 24
    sPTR = 28
    sWS = 36
    sH, sB, sBLK = 38, 39, 40
    sRD, sWR, sWAVE = 41, 42, 43
    sKOFF, sVOFF, sWOFF = 44, 45, 46
    sCNT = 47
    sC = 48
    sD0, sD1 = 49, 51
    sW = 50
    sTO = 52
    sXOFF = 53
    sKS, sVS = 54, 55
    vTRA = 1
    vOK = 5
    vOV = 9
    vT0, vT1, vT2, vT3 = 10, 11, 12, 13
    vLANE = 14
    vM, vLs, vAL, vMC = 15, 16, 17, 18
    vU0, vU1, vU2, vU3 = 19, 20, 21, 22
    vOO = 23
    vACC = 24
    vQ = 88
    vS = [120, 152]
    vP = 184
    vKF = 200
    NKF = 4
    vFR = 216
    NFR = 4
    vKA = 232
    vNM = 240
    vDW = 247
    sFLAG = 95
    THR = 8.0
    vR = 120
    vX = 184
    vOW = 200
    vOX = 204
    vXA = 208

    STAMP = int(os.environ.get("STAMP", "0"))
    PRIO = int(os.environ.get("PRIO", "0"))
    nst = [0]

    def stamp(real=False):
        if not STAMP:
            return
        r = 56 + 2 * nst[0]
        nst[0] += 1
        assert r + 1 < 100
        e(f"{'s_memrealtime' if real else 's_memtime'} {s(r, 2)}")
        e("s_waitcnt lgkmcnt(0)")

    vmq = []
    lgq = []

    def vm_wait(tag):
        idx = max([i for i, t in enumerate(vmq) if t == tag], default=-1)
        if idx < 0:
            return
        n = len(vmq) - 1 - idx
        e(f"s_waitcnt vmcnt({n})")
        del vmq[:idx + 1]

    def lg_wait(tag):
        idx = max([i for i, t in enumerate(lgq) if t == tag], default=-1)
        if idx < 0:
            return
        n = len(lgq) - 1 - idx
        assert n <= 15
        e(f"s_waitcnt lgkmcnt({n})")
        del lgq[:idx + 1]

    def lg_all():
        if lgq:
            e("s_waitcnt lgkmcnt(0)")
            del lgq[:]

    e("attn_kernel:")
    e("s_cmp_ge_u32 s2, 512")
    e("s_cbranch_scc1 L_attn_end")
    DIAG = int(os.environ.get("DIAG", "0"))
    if DIAG:
        e("s_memrealtime s[90:91]")
        e("s_waitcnt lgkmcnt(0)")
    stamp(True)
    stamp()
    MAP = int(os.environ.get("MAP", "1"))
    if MAP == 0:
        e(f"s_lshr_b32 {s(sBLK)}, s2, 8")
        e(f"s_and_b32 {s(sH)}, s2, 31")
        e(f"s_bfe_u32 {s(sB)}, s2, 0x30005")
    else:
        e(f"s_bfe_u32 {s(sBLK)}, s2, 0x10002")
        e(f"s_and_b32 s3, s2, 3")
        e(f"s_bfe_u32 s4, s2, 0x30003")
        e(f"s_lshl_b32 s3, s3, 3")
        e(f"s_or_b32 {s(sH)}, s3, s4")
        e(f"s_lshr_b32 {s(sB)}, s2, 6")
    e(f"s_mul_i32 s3, {s(sBLK)}, 40")
    e("s_add_u32 s4, s0, s3")
    e("s_addc_u32 s5, s1, 0")
    e(f"s_load_dwordx8 {s(sPTR, 8)}, s[4:5], 0")
    e(f"s_load_dwordx2 {s(sWS, 2)}, s[0:1], 96")
    e(f"s_load_dwordx2 s[96:97], s[0:1], 88")
    if PRIO:
        e(f"s_cmp_lt_u32 s2, 256")
        e("s_cbranch_scc0 L_attn_noprio")
        e(f"s_setprio {PRIO}")
        e("L_attn_noprio:")
    e(f"v_and_b32 {v(vLANE)}, 63, v0")
    e(f"v_lshrrev_b32 {v(vT0)}, 6, v0")
    e("s_nop 0")
    e(f"v_readfirstlane_b32 {s(sW)}, {v(vT0)}")
    e(f"s_lshl_b32 {s(sWAVE)}, {s(sW)}, 12")
    e(f"v_lshlrev_b32 {v(vDW)}, 12, {v(vT0)}")
    e(f"v_lshl_add_u32 {v(vDW)}, {v(vLANE)}, 4, {v(vDW)}")
    e(f"v_lshrrev_b32 {v(vT1)}, 4, {v(vLANE)}")
    e(f"v_and_b32 {v(vT2)}, 15, {v(vLANE)}")
    e(f"v_lshl_add_u32 {v(vT3)}, {v(vT0)}, 4, {v(vT1)}")
    e(f"v_lshlrev_b32 {v(vOV)}, 2, {v(vT1)}")
    e(f"v_xor_b32 {v(vOV)}, {v(vOV)}, {v(vT2)}")
    e(f"v_lshlrev_b32 {v(vOV)}, 4, {v(vOV)}")
    for n in range(4):
        e(f"v_add_u32 {v(vOW + n)}, {4 * n}, {v(vT3)}")
        e(f"v_lshl_add_u32 {v(vOW + n)}, {v(vOW + n)}, 13, {v(vOV)}")
        if n:
            e(f"v_subrev_u32 {v(vOW + n)}, {1024 * n}, {v(vOW + n)}")
    e(f"v_lshl_add_u32 {v(vOV)}, {v(vT3)}, 8, {v(vOV)}")
    for n in range(4):
        e(f"v_add_u32 {v(vOK + n)}, {4 * n}, {v(vT1)}")
        e(f"v_xor_b32 {v(vOK + n)}, {v(vOK + n)}, {v(vT2)}")
        e(f"v_lshlrev_b32 {v(vOK + n)}, 4, {v(vOK + n)}")
        e(f"v_lshl_add_u32 {v(vOK + n)}, {v(vT3)}, 8, {v(vOK + n)}")
    e(f"v_lshrrev_b32 {v(vT1)}, 3, {v(vLANE)}")
    e(f"v_lshl_add_u32 {v(vT1)}, {v(vT0)}, 5, {v(vT1)}")
    e(f"v_mul_u32_u24 {v(vT1)}, 1152, {v(vT1)}")
    e(f"v_lshrrev_b32 {v(vT2)}, 4, {v(vLANE)}")
    e(f"v_and_b32 {v(vT3)}, 7, {v(vLANE)}")
    for n in range(4):
        e(f"v_add_u32 {v(vOX + n)}, {4 * n}, {v(vT2)}")
        e(f"v_and_b32 {v(vOX + n)}, 7, {v(vOX + n)}")
        e(f"v_xor_b32 {v(vOX + n)}, {v(vOX + n)}, {v(vT3)}")
        e(f"v_lshl_add_u32 {v(vOX + n)}, {v(vOX + n)}, 4, {v(vT1)}")
        e(f"v_add_u32 {v(vOX + n)}, {8 * 1152 * n - 1024 * n}, {v(vOX + n)}")
    e(f"v_and_b32 {v(vT1)}, 31, {v(vLANE)}")
    e(f"v_bfe_u32 {v(vT2)}, {v(vLANE)}, 1, 3")
    e(f"v_lshrrev_b32 {v(vT3)}, 5, {v(vLANE)}")
    e(f"v_xor_b32 {v(vT2)}, {v(vT2)}, {v(vT3)}")
    e(f"v_lshl_add_u32 {v(vT1)}, {v(vT0)}, 5, {v(vT1)}")
    e(f"v_lshlrev_b32 {v(vT1)}, 7, {v(vT1)}")
    for u in range(4):
        e(f"v_xor_b32 {v(vT3)}, {2 * u}, {v(vT2)}")
        e(f"v_lshl_add_u32 {v(vXA + u)}, {v(vT3)}, 4, {v(vT1)}")

    def trbase(sigma, slot):
        e(f"v_lshrrev_b32 {v(vT0)}, 5, {v(vLANE)}")
        e(f"v_bfe_u32 {v(vT1)}, {v(vLANE)}, 2, 2")
        e(f"v_lshl_add_u32 {v(vT0)}, {v(vT0)}, 3, {v(vT1)}")
        e(f"v_lshlrev_b32 {v(vT0)}, 8, {v(vT0)}")
        e(f"v_bfe_u32 {v(vT2)}, {v(vLANE)}, 4, 1")
        e(f"v_lshl_add_u32 {v(vT0)}, {v(vT2)}, 5, {v(vT0)}")
        if sigma:
            e(f"v_and_b32 {v(vT2)}, 1, {v(vLANE)}")
            e(f"v_bfe_u32 {v(vT3)}, {v(vLANE)}, 1, 1")
        else:
            e(f"v_bfe_u32 {v(vT2)}, {v(vLANE)}, 1, 1")
            e(f"v_and_b32 {v(vT3)}, 1, {v(vLANE)}")
        e(f"v_lshl_add_u32 {v(vT0)}, {v(vT2)}, 4, {v(vT0)}")
        e(f"v_lshl_add_u32 {v(vT0)}, {v(vT3)}, 3, {v(vT0)}")
        e(f"v_add_u32 {v(vT0)}, {slot * SLOT}, {v(vT0)}")
        for D in range(4):
            e(f"v_xor_b32 {v(vT2)}, {D}, {v(vT1)}")
            e(f"v_lshl_add_u32 {v(vTRA + D)}, {v(vT2)}, 6, {v(vT0)}")

    trbase(True, 1)

    e("s_waitcnt lgkmcnt(0)")
    e(f"s_lshl_b32 s3, {s(sB)}, 5")
    e(f"s_add_u32 s3, s3, {s(sH)}")
    e("s_lshl_b32 s3, s3, 18")
    for (S, p) in ((SK, sPTR + 2), (SV, sPTR + 4)):
        e(f"s_add_u32 {s(S)}, {s(p)}, s3")
        e(f"s_addc_u32 {s(S + 1)}, {s(p + 1)}, 0")
        e(f"s_mov_b32 {s(S + 2)}, 262144")
        e(f"s_mov_b32 {s(S + 3)}, 0x20000")
    e(f"s_mul_i32 s3, {s(sB)}, 147456")
    e(f"s_add_u32 {s(SX)}, {s(sPTR)}, s3")
    e(f"s_addc_u32 {s(SX + 1)}, {s(sPTR + 1)}, 0")
    e(f"s_mov_b32 {s(SX + 2)}, 147456")
    e(f"s_mov_b32 {s(SX + 3)}, 0x20000")
    e(f"s_lshl_b32 s3, {s(sH)}, 8")
    e(f"s_add_u32 {s(SW)}, {s(sPTR + 6)}, s3")
    e(f"s_addc_u32 {s(SW + 1)}, {s(sPTR + 7)}, 0")
    e(f"s_sub_u32 {s(SW + 2)}, {576 * 8192}, s3")
    e(f"s_mov_b32 {s(SW + 3)}, 0x20000")
    e(f"s_lshl_b32 s3, {s(sBLK)}, 3")
    e(f"s_add_u32 s3, s3, {s(sB)}")
    e("s_lshl_b32 s3, s3, 20")
    e(f"s_lshl_b32 s4, {s(sH)}, 12")
    e("s_add_u32 s3, s3, s4")
    e(f"s_add_u32 {s(SO)}, {s(sWS)}, s3")
    e(f"s_addc_u32 {s(SO + 1)}, {s(sWS + 1)}, 0")
    e(f"s_sub_u32 {s(SO + 2)}, {1 << 20}, s4")
    e(f"s_mov_b32 {s(SO + 3)}, 0x20000")
    e(f"s_mov_b32 {s(sC)}, {f32bits(128 ** -0.5 * 1.4426950408889634):#x}")
    e("s_mov_b32 s98, 256")
    e("s_mov_b32 s99, 0x20000")
    e(f"s_mov_b32 {s(sWR)}, 0")
    e(f"s_mov_b32 {s(sKOFF)}, 0")
    e(f"s_mov_b32 {s(sVOFF)}, 0")
    QROT = int(os.environ.get("QROT", "1"))
    if QROT:
        if MAP == 0:
            e(f"s_lshr_b32 s3, {s(sH)}, 3")
            e("s_lshl_b32 s3, s3, 1")
        else:
            e(f"s_and_b32 s3, {s(sH)}, 7")
        e(f"s_add_u32 s3, s3, {s(sB)}")
        e("s_cmp_ge_u32 s3, 9")
        e("s_cselect_b32 s4, 9, 0")
        e("s_sub_u32 s3, s3, s4")
        e(f"s_lshl_b32 {s(sWOFF)}, s3, 19")
        e(f"s_lshl_b32 {s(sXOFF)}, s3, 7")
    else:
        e(f"s_mov_b32 {s(sWOFF)}, 0")
        e(f"s_mov_b32 {s(sXOFF)}, 0")

    def adv_wr():
        e(f"s_add_u32 {s(sWR)}, {s(sWR)}, {SLOT}")
        e(f"s_cmp_eq_u32 {s(sWR)}, {SLOT * NSLOT}")
        e(f"s_cselect_b32 {s(sWR)}, 0, {s(sWR)}")

    def dma_parts(kind, tag):
        g = []
        first = [f"s_add_u32 m0, {s(sWR)}, {s(sWAVE)}",
                 f"s_add_u32 {s(sWR)}, {s(sWR)}, {SLOT}"]
        for n in range(4):
            if kind == "W":
                i = f"buffer_load_dwordx4 {v(vOW + n)}, {s(SW, 4)}, {s(sWOFF)} offen offset:{1024 * n} lds"
            elif kind == "X":
                i = f"buffer_load_dwordx4 {v(vOX + n)}, {s(SX, 4)}, {s(sXOFF)} offen offset:{1024 * n} lds"
            elif kind == "K":
                i = f"buffer_load_dwordx4 {v(vOK + n)}, {s(SK, 4)}, {s(sKOFF)} offen offset:{1024 * n}{NT} lds"
            else:
                i = f"buffer_load_dwordx4 {v(vOV)}, {s(SV, 4)}, {s(sVOFF)} offen offset:{1024 * n}{NT} lds"
            g.append((first if n == 0 else []) + [i])
        so, inc = {"W": (sWOFF, 64 * 8192), "X": (sXOFF, 128), "K": (sKOFF, SLOT), "V": (sVOFF, SLOT)}[kind]
        g[-1] += [f"s_add_u32 {s(so)}, {s(so)}, {inc}",
                  f"s_cmp_eq_u32 {s(sWR)}, {SLOT * NSLOT}",
                  f"s_cselect_b32 {s(sWR)}, 0, {s(sWR)}"]
        if kind in "XW":
            g[-1] += [f"s_cmp_eq_u32 {s(so)}, {9 * inc}",
                      f"s_cselect_b32 {s(so)}, 0, {s(so)}"]
        return g

    def emit_group(g, tag):
        for i in g:
            e(i)
            if i.startswith("buffer_load"):
                vmq.append(tag)

    def dma(kind, tag):
        for g in dma_parts(kind, tag):
            emit_group(g, tag)

    def rload(i, kind):
        for n in range(4):
            r = vR + 16 * i + 4 * n
            if kind == "K":
                e(f"buffer_load_dwordx4 {v(r, 4)}, {v(vOK + n)}, {s(SK, 4)}, {s(sKOFF)} offen offset:{1024 * n}{NT}")
            else:
                e(f"buffer_load_dwordx4 {v(r, 4)}, {v(vOV)}, {s(SV, 4)}, {s(sVOFF)} offen offset:{1024 * n}{NT}")
            vmq.append(f"R{i}")
        so = sKOFF if kind == "K" else sVOFF
        e(f"s_add_u32 {s(so)}, {s(so)}, {SLOT}")

    def rdump(i):
        vm_wait(f"R{i}")
        e(f"v_add_u32 {v(vT0)}, {s(sWR)}, {v(vDW)}")
        adv_wr()
        for n in range(4):
            e(f"ds_write_b128 {v(vT0)}, {v(vR + 16 * i + 4 * n, 4)} offset:{1024 * n}")
            lgq.append("dump")

    RK = ["K", "K", "V", "K"]

    def tr_rd(f, nfr=NFR):
        u, D = f >> 2, f & 3
        r = vFR + 4 * (f % nfr)
        e(f"ds_read_b64_tr_b16 {v(r, 2)}, {v(vTRA + D)} offset:{4096 * u}")
        e(f"ds_read_b64_tr_b16 {v(r + 2, 2)}, {v(vTRA + D)} offset:{4096 * u + 1024}")
        lgq.extend([f"F{f}", f"F{f}"])

    def qphase(RSCHED):
        useR = RSCHED is not None
        seq = ["X", "W"] * 9 + (["R0", "R1", "R2", "R3"] if useR else RK)
        RSCHED = RSCHED or {}

        def issue(n):
            k = seq[n]
            if k[0] == "R":
                rdump(int(k[1]))
            else:
                dma(k, f"T{n}")

        for i in RSCHED.get(-2, []):
            rload(i, RK[i])
        for n in range(5):
            issue(n)
        for i in RSCHED.get(-1, []):
            rload(i, RK[i])
        for q in range(9):
            vm_wait(f"T{2 * q + 1}")
            lg_all()
            e("s_barrier")
            stamp()
            for u in range(4):
                e(f"ds_read_b128 {v(vX + 4 * u, 4)}, {v(vXA + u)}")
                lgq.append(f"X{u}")
            for f in range(NFR - 1):
                tr_rd(f)
            if q >= 1:
                issue(2 * q + 3)
                issue(2 * q + 4)
            for i in RSCHED.get(q, []):
                rload(i, RK[i])
            dx = ((2 * q + 2) % 5 - (2 * q) % 5) * SLOT
            for f in range(16):
                u, D = f >> 2, f & 3
                lg_wait(f"F{f}")
                r = vFR + 4 * (f % NFR)
                c = "0" if (q == 0 and u == 0) else v(vACC + 16 * D, 16)
                e(f"v_mfma_f32_32x32x16_bf16 {v(vACC + 16 * D, 16)}, {v(r, 4)}, {v(vX + 4 * u, 4)}, {c}")
                if f + NFR - 1 < 16:
                    tr_rd(f + NFR - 1)
                if f == 0 and q < 8:
                    for u2 in range(4):
                        e(f"v_add_u32 {v(vXA + u2)}, {dx & 0xffffffff:#x}, {v(vXA + u2)}")
            if q < 8:
                dw = ((2 * q + 3) % 5 - (2 * q + 1) % 5) * SLOT
                for D in range(4):
                    e(f"v_add_u32 {v(vTRA + D)}, {dw & 0xffffffff:#x}, {v(vTRA + D)}")
        vm_wait("T18")
        lg_all()
        e("s_barrier")
        stamp()
        issue(21)
        lg_all()
        del vmq[:]

    RA = eval(os.environ.get("RA", "None"))
    RB = eval(os.environ.get("RB", "{-2:[0,1,2,3]}"))
    e(f"s_cmp_lt_u32 s2, 256")
    e("s_cbranch_scc0 L_attn_qb")
    n0 = nst[0]
    qphase(RA)
    e("s_branch L_attn_qdone")
    e("L_attn_qb:")
    nst[0] = n0
    qphase(RB)
    e("L_attn_qdone:")
    trbase(False, 20 % 5)
    e(f"v_and_b32 {v(vT0)}, 0x13, {v(vLANE)}")
    e(f"v_bfe_u32 {v(vT1)}, {v(vLANE)}, 2, 1")
    e(f"v_lshl_or_b32 {v(vT0)}, {v(vT1)}, 3, {v(vT0)}")
    e(f"v_bfe_u32 {v(vT1)}, {v(vLANE)}, 3, 1")
    e(f"v_lshl_or_b32 {v(vT0)}, {v(vT1)}, 2, {v(vT0)}")
    e(f"v_and_b32 {v(vT1)}, 15, {v(vT0)}")
    e(f"v_lshrrev_b32 {v(vT2)}, 5, {v(vLANE)}")
    e(f"v_xor_b32 {v(vT1)}, {v(vT1)}, {v(vT2)}")
    e(f"v_lshlrev_b32 {v(vT0)}, 8, {v(vT0)}")
    e(f"v_add_u32 {v(vT0)}, {(18 % 5) * SLOT}, {v(vT0)}")
    for t in range(8):
        e(f"v_xor_b32 {v(vT2)}, {2 * t}, {v(vT1)}")
        e(f"v_lshl_add_u32 {v(vKA + t)}, {v(vT2)}, 4, {v(vT0)}")
    e(f"v_bfe_u32 {v(vT0)}, {v(vLANE)}, 4, 1")
    e(f"v_lshl_add_u32 {v(vT0)}, {s(sW)}, 1, {v(vT0)}")
    e(f"v_lshlrev_b32 {v(vT0)}, 17, {v(vT0)}")
    e(f"v_and_b32 {v(vT1)}, 15, {v(vLANE)}")
    e(f"v_lshrrev_b32 {v(vT2)}, 5, {v(vLANE)}")
    e(f"v_lshl_add_u32 {v(vT1)}, {v(vT2)}, 4, {v(vT1)}")
    e(f"v_lshl_add_u32 {v(vOO)}, {v(vT1)}, 4, {v(vT0)}")
    for i in range(64):
        e(f"v_mul_f32 {v(vACC + i)}, {s(sC)}, {v(vACC + i)}")
    for i in range(32):
        e(f"v_cvt_pk_bf16_f32 {v(vQ + i)}, {v(vACC + 2 * i)}, {v(vACC + 2 * i + 1)}")
    for i in range(64):
        e(f"v_mov_b32 {v(vACC + i)}, 0")
    e(f"s_mov_b32 {s(sFLAG)}, 0")
    e(f"s_mov_b32 {s(sC)}, {f32bits(THR):#x}")
    e(f"v_mov_b32 {v(vLs)}, 0")
    e(f"s_mov_b32 {s(sCNT)}, 0")
    e(f"s_mov_b32 {s(sKS)}, {(18 % 5) * SLOT}")
    e(f"s_mov_b32 {s(sVS)}, {(20 % 5) * SLOT}")
    lg_all()

    def k_rd(f):
        kb, t = f >> 3, f & 7
        e(f"ds_read_b128 {v(vKF + 4 * (f % NKF), 4)}, {v(vKA + t)} offset:{8192 * kb}")
        lgq.append(f"K{f}")

    def qk_slot(f, S, first=False):
        kb, t = f >> 3, f & 7
        lg_wait(f"K{f}")
        c = ("0" if first else v(vNM, 16)) if t == 0 else v(S + 16 * kb, 16)
        e(f"v_mfma_f32_32x32x16_bf16 {v(S + 16 * kb, 16)}, {v(vKF + 4 * (f % NKF), 4)}, {v(vQ + 4 * t, 4)}, {c}")
        if f + NKF - 1 < 16:
            k_rd(f + NKF - 1)

    slow = []

    def sm1(S, lab):
        a = [f"v_max3_f32 {v(vU0)}, {v(S + 0)}, {v(S + 1)}, {v(S + 2)}",
             f"v_max3_f32 {v(vU1)}, {v(S + 3)}, {v(S + 4)}, {v(S + 5)}"]
        for k, i in enumerate(range(6, 16, 2)):
            u = vU0 if k % 2 == 0 else vU1
            a.append(f"v_max3_f32 {v(u)}, {v(u)}, {v(S + i)}, {v(S + i + 1)}")
        b = []
        for k, i in enumerate(range(16, 32, 2)):
            u = vU1 if k % 2 == 0 else vU0
            b.append(f"v_max3_f32 {v(u)}, {v(u)}, {v(S + i)}, {v(S + i + 1)}")
        b += [f"v_max_f32 {v(vU0)}, {v(vU0)}, {v(vU1)}",
              f"v_mov_b32 {v(vU1)}, {v(vU0)}",
              "s_nop 1",
              f"v_permlane32_swap_b32 {v(vU0)}, {v(vU1)}",
              f"v_max_f32 {v(vU0)}, {v(vU0)}, {v(vU1)}"]
        if lab is None:
            for i in range(32):
                b.append(f"v_sub_f32 {v(S + i)}, {v(S + i)}, {v(vU0)}")
            for i in range(16):
                b.append(f"v_sub_f32 {v(vNM + i)}, 0, {v(vU0)}")
            return a, b
        b += [f"v_cmp_lt_f32 vcc, {s(sC)}, {v(vU0)}",
              f"s_cbranch_vccnz L_slow_{lab}",
              f"L_back_{lab}:"]
        slow.append(f"L_slow_{lab}:")
        slow.append(f"v_max_f32 {v(vU0)}, 0, {v(vU0)}")
        slow.append(f"v_sub_f32 {v(vAL)}, 0, {v(vU0)}")
        slow.append(f"v_exp_f32 {v(vAL)}, {v(vAL)}")
        for i in range(32):
            slow.append(f"v_sub_f32 {v(S + i)}, {v(S + i)}, {v(vU0)}")
        for i in range(16):
            slow.append(f"v_sub_f32 {v(vNM + i)}, {v(vNM + i)}, {v(vU0)}")
        slow.append(f"s_mov_b32 {s(sFLAG)}, 1")
        slow.append(f"s_branch L_back_{lab}")
        return a, b

    def rs_check(lab):
        e(f"s_cmp_lg_u32 {s(sFLAG)}, 0")
        e(f"s_cbranch_scc1 L_rs_{lab}")
        e(f"L_rsback_{lab}:")
        slow.append(f"L_rs_{lab}:")
        slow.append(f"v_mul_f32 {v(vLs)}, {v(vLs)}, {v(vAL)}")
        for i in range(64):
            slow.append(f"v_mul_f32 {v(vACC + i)}, {v(vACC + i)}, {v(vAL)}")
        slow.append(f"s_mov_b32 {s(sFLAG)}, 0")
        slow.append(f"s_branch L_rsback_{lab}")

    NEXP2 = int(os.environ.get("NEXP2", "20"))

    def exps(S, lo, hi):
        return [f"v_exp_f32 {v(S + i)}, {v(S + i)}" for i in range(lo, hi)]

    def sm2_rest(S):
        r = exps(S, NEXP2, 32)
        r += [f"v_add_f32 {v(vU0)}, {v(S + 0)}, {v(S + 1)}",
              f"v_add_f32 {v(vU1)}, {v(S + 2)}, {v(S + 3)}",
              f"v_add_f32 {v(vU2)}, {v(S + 4)}, {v(S + 5)}",
              f"v_add_f32 {v(vU3)}, {v(S + 6)}, {v(S + 7)}"]
        for i in range(8, 32, 4):
            r += [f"v_add_f32 {v(vU0)}, {v(vU0)}, {v(S + i)}",
                  f"v_add_f32 {v(vU1)}, {v(vU1)}, {v(S + i + 1)}",
                  f"v_add_f32 {v(vU2)}, {v(vU2)}, {v(S + i + 2)}",
                  f"v_add_f32 {v(vU3)}, {v(vU3)}, {v(S + i + 3)}"]
        for i in range(16):
            r.append(f"v_cvt_pk_bf16_f32 {v(vP + i)}, {v(S + 2 * i)}, {v(S + 2 * i + 1)}")
        r += [f"v_add_f32 {v(vU0)}, {v(vU0)}, {v(vU1)}",
              f"v_add_f32 {v(vU2)}, {v(vU2)}, {v(vU3)}",
              f"v_add_f32 {v(vLs)}, {v(vLs)}, {v(vU0)}",
              f"v_add_f32 {v(vLs)}, {v(vLs)}, {v(vU2)}"]
        return r

    def cost(i):
        if i.startswith("v_exp"):
            return 2
        if i.endswith(":"):
            return 0
        return 1

    def spread(lst, nslots, lead=0):
        tot = sum(cost(i) for i in lst) - lead
        out = [[] for _ in range(nslots + 1)]
        acc = 0
        k = 0
        for i in lst:
            if k == 0 and acc + cost(i) > lead:
                k = 1
                acc = 0
            if k >= 1:
                while k < nslots and acc + cost(i) / 2 > tot * k / nslots:
                    k += 1
            out[k].append(i)
            acc += cost(i)
        return out

    def adv_slot(sreg, sdel):
        e(f"s_add_u32 {s(sdel)}, {s(sreg)}, {2 * SLOT}")
        e(f"s_cmp_ge_u32 {s(sdel)}, {SLOT * NSLOT}")
        e(f"s_cselect_b32 {s(sTO)}, {SLOT * NSLOT}, 0")
        e(f"s_sub_u32 {s(sdel)}, {s(sdel)}, {s(sTO)}")
        e(f"s_sub_u32 {s(sTO)}, {s(sdel)}, {s(sreg)}")
        e(f"s_mov_b32 {s(sreg)}, {s(sdel)}")
        e(f"s_mov_b32 {s(sdel)}, {s(sTO)}")

    for f in range(NKF - 1):
        k_rd(f)
    for f in range(16):
        qk_slot(f, vS[0], True)
    for t in range(8):
        e(f"v_add_u32 {v(vKA + t)}, {SLOT}, {v(vKA + t)}")
    e(f"s_mov_b32 {s(sKS)}, {(19 % 5) * SLOT}")
    a, b = sm1(vS[0], None)
    e("s_nop 3")
    for i in a + b + exps(vS[0], 0, NEXP2):
        e(i)
    stamp()
    assert not lgq
    vm_state = list(vmq)
    if STAMP:
        e("s_mov_b32 s94, 0")
        e("v_mov_b32 v15, 0")

    e("L_attn_loop:")
    for par in range(2):
        Sc, Sn = vS[par], vS[1 - par]
        if STAMP:
            e("s_memtime s[92:93]")
            e("s_waitcnt lgkmcnt(0)")
            e(f"v_cmp_eq_u32 vcc, s94, {v(vLANE)}")
            e("v_mov_b32 v18, s92")
            e("s_nop 1")
            e("v_cndmask_b32 v15, v15, v18, vcc")
            e("s_add_u32 s94, s94, 1")
        e("s_waitcnt vmcnt(4)")
        e("s_barrier")
        if STAMP:
            e("s_memtime s[92:93]")
            e("s_waitcnt lgkmcnt(0)")
            e(f"v_cmp_eq_u32 vcc, s94, {v(vLANE)}")
            e("v_mov_b32 v18, s92")
            e("s_nop 1")
            e("v_cndmask_b32 v15, v15, v18, vcc")
            e("s_add_u32 s94, s94, 1")
        for f in range(NKF - 1):
            k_rd(f)
        dparts = dma_parts("V", "x") + dma_parts("K", "x")
        ch = spread(sm2_rest(Sc), 16, lead=12)
        for i in ch[0]:
            e(i)
        adv_slot(sKS, sD0)
        adv_slot(sVS, sD1)
        for f in range(16):
            qk_slot(f, Sn)
            if f == 2:
                rs_check(par)
            if f % 2 == 0:
                for i in dparts[f // 2]:
                    e(i)
            if f >= 16 - (NFR - 1):
                tr_rd(f - (16 - (NFR - 1)))
            if f == 12:
                for t in range(8):
                    e(f"v_add_u32 {v(vKA + t)}, {s(sD0)}, {v(vKA + t)}")
            for i in ch[f + 1]:
                e(i)
        a, b = sm1(Sn, par)
        ch = spread(b + exps(Sn, 0, NEXP2), 14)
        for f in range(16):
            u, D = f >> 2, f & 3
            lg_wait(f"F{f}")
            r = vFR + 4 * (f % NFR)
            e(f"v_mfma_f32_32x32x16_bf16 {v(vACC + 16 * D, 16)}, {v(r, 4)}, {v(vP + 4 * u, 4)}, {v(vACC + 16 * D, 16)}")
            if f + NFR - 1 < 16:
                tr_rd(f + NFR - 1)
            if f == 0:
                for i in a:
                    e(i)
            if f == 16 - NFR:
                for D2 in range(4):
                    e(f"v_add_u32 {v(vTRA + D2)}, {s(sD1)}, {v(vTRA + D2)}")
            if f >= 2:
                for i in ch[f - 1]:
                    e(i)
        assert not lgq
    e(f"s_add_u32 {s(sCNT)}, {s(sCNT)}, 1")
    e(f"s_cmp_lt_u32 {s(sCNT)}, 8")
    e("s_cbranch_scc1 L_attn_loop")

    stamp()
    e(f"s_add_u32 s3, s2, {s(sW)}")
    e("s_cmp_eq_u32 s3, 0")
    e("s_cbranch_scc0 L_attn_nononce")
    e("s_memrealtime s[6:7]")
    e(f"s_add_u32 s4, {s(sWS)}, {56 << 20}")
    e(f"s_addc_u32 s5, {s(sWS + 1)}, 0")
    e("s_waitcnt lgkmcnt(0)")
    e(f"v_mov_b32 {v(vU0)}, s6")
    e(f"v_mov_b32 {v(vU1)}, 0")
    e("s_mov_b32 s6, 4")
    e("s_mov_b32 s7, 0x20000")
    e(f"buffer_store_dword {v(vU0)}, {v(vU1)}, s[4:7], 0 offen")
    e("L_attn_nononce:")
    e(f"v_mov_b32 {v(vU1)}, {v(vLs)}")
    e("s_nop 1")
    e(f"v_permlane32_swap_b32 {v(vLs)}, {v(vU1)}")
    e(f"v_add_f32 {v(vLs)}, {v(vLs)}, {v(vU1)}")
    e(f"v_rcp_f32 {v(vLs)}, {v(vLs)}")
    e("s_nop 7")
    e("s_nop 3")
    for i in range(64):
        e(f"v_mul_f32 {v(vACC + i)}, {v(vACC + i)}, {v(vLs)}")
    for D in range(4):
        for p in range(2):
            r = vS[0] + 8 * D + 4 * p
            a = vACC + 16 * D + 4 * p
            e(f"v_cvt_pk_bf16_f32 {v(r)}, {v(a)}, {v(a + 1)}")
            e(f"v_cvt_pk_bf16_f32 {v(r + 1)}, {v(a + 2)}, {v(a + 3)}")
            e(f"v_cvt_pk_bf16_f32 {v(r + 2)}, {v(a + 8)}, {v(a + 9)}")
            e(f"v_cvt_pk_bf16_f32 {v(r + 3)}, {v(a + 10)}, {v(a + 11)}")
            e(f"buffer_store_dwordx4 {v(r, 4)}, {v(vOO)}, {s(SO, 4)}, 0 offen offset:{1024 * D + 512 * p}")
    e("s_waitcnt vmcnt(0)")
    if DIAG:
        e(f"s_cmp_eq_u32 {s(sW)}, 0")
        e("s_cbranch_scc0 L_attn_end")
        e("s_memrealtime s[92:93]")
        e("s_lshl_b32 s3, s2, 3")
        e(f"s_add_u32 s3, s3, {57 << 20}")
        e(f"s_add_u32 s4, {s(sWS)}, s3")
        e(f"s_addc_u32 s5, {s(sWS + 1)}, 0")
        e("s_mov_b32 s6, 8")
        e("s_mov_b32 s7, 0x20000")
        e("s_waitcnt lgkmcnt(0)")
        e("v_mov_b32 v2, s90")
        e("v_mov_b32 v3, s92")
        e("v_mov_b32 v1, 0")
        e("buffer_store_dwordx2 v[2:3], v1, s[4:7], 0 offen")
        e("s_waitcnt vmcnt(0)")
    if STAMP:
        stamp()
        stamp(True)
        e(f"s_lshl_b32 s3, s2, 10")
        e(f"s_lshl_b32 s4, {s(sW)}, 8")
        e(f"s_add_u32 s3, s3, s4")
        e(f"s_add_u32 s3, s3, {64 << 20}")
        e(f"s_add_u32 {s(SO)}, {s(sWS)}, s3")
        e(f"s_addc_u32 {s(SO + 1)}, {s(sWS + 1)}, 0")
        e(f"s_mov_b32 {s(SO + 2)}, 256")
        e("v_mov_b32 v1, 0")
        for i in range(nst[0]):
            e(f"v_mov_b32 v2, {s(56 + 2 * i)}")
            e(f"v_mov_b32 v3, {s(57 + 2 * i)}")
            e(f"buffer_store_dwordx2 v[2:3], v1, {s(SO, 4)}, 0 offen offset:{8 * i}")
            e("s_waitcnt vmcnt(0)")
        print("attn nstamps", nst[0])
        e(f"s_add_u32 {s(SO)}, {s(SO)}, {1 << 20}")
        e(f"s_addc_u32 {s(SO + 1)}, {s(SO + 1)}, 0")
        e(f"v_lshlrev_b32 v1, 2, {v(vLANE)}")
        e(f"buffer_store_dword v15, v1, {s(SO, 4)}, 0 offen")
        e("s_waitcnt vmcnt(0)")
    e("L_attn_end:")
    e("s_endpgm")
    for i in slow:
        e(i)


def gen_oproj():
    SW, SOo, SP, SD, SOUT = 8, 12, 16, 20, 24
    sBLK, sSP, sB, sCT, sW = 28, 29, 30, 31, 32
    sWO, sWS, sOUT, sDBG = 34, 36, 38, 40
    sM0, sWOFF, sOOFF, sT = 42, 43, 44, 45
    sTILE = 46
    sNON = 47
    sROT, sOOFF2 = 48, 49
    STG = 128 * 288
    NS = 4
    vLANE, vT0, vT1, vT2, vT3 = 1, 2, 3, 4, 5
    vOW = 6
    vOO = 15
    vTRB = 17
    vTRA = 18
    vPO = 19
    vACC = 24
    vFR = 96
    NFR = 8
    vOB = 128

    STAMP = int(os.environ.get("STAMP2", "0"))
    nst = [0]

    def stamp(real=False):
        if not STAMP:
            return
        r = 56 + 2 * nst[0]
        nst[0] += 1
        assert r + 1 < 100
        e(f"{'s_memrealtime' if real else 's_memtime'} {s(r, 2)}")
        e("s_waitcnt lgkmcnt(0)")

    e("oproj_kernel:")
    e("s_cmp_ge_u32 s2, 256")
    e("s_cbranch_scc1 L_op_end")
    DIAG = int(os.environ.get("DIAG", "0"))
    if DIAG:
        e("s_memrealtime s[90:91]")
        e("s_waitcnt lgkmcnt(0)")
    stamp(True)
    stamp()
    e(f"s_and_b32 {s(sSP)}, s2, 3")
    e(f"s_bfe_u32 {s(sBLK)}, s2, 0x10002")
    e(f"s_bfe_u32 {s(sCT)}, s2, 0x20003")
    e(f"s_lshr_b32 {s(sB)}, s2, 5")
    e(f"s_mul_i32 s3, {s(sBLK)}, 40")
    e("s_add_u32 s4, s0, s3")
    e("s_addc_u32 s5, s1, 0")
    e(f"s_load_dwordx2 {s(sWO, 2)}, s[4:5], 32")
    e(f"s_load_dwordx2 {s(sOUT, 2)}, s[0:1], 80")
    e(f"s_load_dwordx2 {s(sDBG, 2)}, s[0:1], 88")
    e(f"s_load_dwordx2 {s(sWS, 2)}, s[0:1], 96")
    e(f"v_and_b32 {v(vLANE)}, 63, v0")
    e(f"v_lshrrev_b32 {v(vT0)}, 6, v0")
    e("s_nop 0")
    e(f"v_readfirstlane_b32 {s(sW)}, {v(vT0)}")
    e(f"v_mul_u32_u24 {v(vT0)}, 576, {v(vT0)}")
    e(f"v_add_u32 {v(vT0)}, {v(vT0)}, {v(vLANE)}")
    for n in range(9):
        e(f"v_add_u32 {v(vT1)}, {64 * n}, {v(vT0)}")
        e(f"v_mul_u32_u24 {v(vT2)}, 3641, {v(vT1)}")
        e(f"v_lshrrev_b32 {v(vT2)}, 16, {v(vT2)}")
        e(f"v_mul_u32_u24 {v(vT3)}, 18, {v(vT2)}")
        e(f"v_sub_u32 {v(vT3)}, {v(vT1)}, {v(vT3)}")
        e(f"v_mul_u32_u24 {v(vT2)}, 1152, {v(vT2)}")
        e(f"v_lshl_add_u32 {v(vOW + n)}, {v(vT3)}, 4, {v(vT2)}")
        if n % 4:
            e(f"v_subrev_u32 {v(vOW + n)}, {1024 * (n % 4)}, {v(vOW + n)}")
    e(f"v_lshrrev_b32 {v(vT0)}, 2, {v(vLANE)}")
    e(f"v_mul_u32_u24 {v(vT0)}, 288, {v(vT0)}")
    e(f"v_and_b32 {v(vT1)}, 3, {v(vLANE)}")
    e(f"v_lshl_add_u32 {v(vTRB)}, {v(vT1)}, 3, {v(vT0)}")
    e(f"s_lshl_b32 s3, {s(sW)}, 18")
    e(f"s_lshl_b32 s4, {s(sSP)}, 15")
    e("s_add_u32 s3, s3, s4")
    e(f"v_lshlrev_b32 {v(vT0)}, 4, {v(vLANE)}")
    e(f"v_add_u32 {v(vOO)}, s3, {v(vT0)}")
    e(f"v_add_u32 {v(vOO + 1)}, 0x20000, {v(vOO)}")
    e("s_waitcnt lgkmcnt(0)")
    e(f"s_mul_i32 s3, {s(sSP)}, {1024 * 1152}")
    e(f"s_mul_i32 s4, {s(sCT)}, 288")
    e("s_add_u32 s3, s3, s4")
    e(f"s_add_u32 {s(SW)}, {s(sWO)}, s3")
    e(f"s_addc_u32 {s(SW + 1)}, {s(sWO + 1)}, 0")
    e(f"s_sub_u32 {s(SW + 2)}, {4096 * 1152}, s3")
    e(f"s_mov_b32 {s(SW + 3)}, 0x20000")
    e(f"s_lshl_b32 s3, {s(sBLK)}, 3")
    e(f"s_add_u32 s3, s3, {s(sB)}")
    e(f"s_lshl_b32 {s(sTILE)}, s3, 2")
    e(f"s_add_u32 {s(sTILE)}, {s(sTILE)}, {s(sCT)}")
    e("s_lshl_b32 s3, s3, 20")
    e(f"s_add_u32 {s(SOo)}, {s(sWS)}, s3")
    e(f"s_addc_u32 {s(SOo + 1)}, {s(sWS + 1)}, 0")
    e(f"s_mov_b32 {s(SOo + 2)}, {1 << 20}")
    e(f"s_mov_b32 {s(SOo + 3)}, 0x20000")
    e(f"s_mul_i32 s3, {s(sTILE)}, {16 * 18432}")
    e(f"s_add_u32 s3, s3, {16 << 20}")
    e(f"s_add_u32 {s(SP)}, {s(sWS)}, s3")
    e(f"s_addc_u32 {s(SP + 1)}, {s(sWS + 1)}, 0")
    e(f"s_mov_b32 {s(SP + 2)}, {16 * 18432}")
    e(f"s_mov_b32 {s(SP + 3)}, 0x20000")
    e(f"s_mov_b32 {s(SD)}, {s(sDBG)}")
    e(f"s_mov_b32 {s(SD + 1)}, {s(sDBG + 1)}")
    e(f"s_mov_b32 {s(SD + 2)}, 256")
    e(f"s_mov_b32 {s(SD + 3)}, 0x20000")
    e(f"s_lshl_b32 s3, {s(sB)}, 7")
    e(f"s_lshl_b32 s4, {s(sW)}, 5")
    e("s_add_u32 s3, s3, s4")
    e("s_mul_i32 s3, s3, 2304")
    e(f"s_mul_i32 s4, {s(sBLK)}, 1152")
    e("s_add_u32 s3, s3, s4")
    e(f"s_mul_i32 s4, {s(sCT)}, 288")
    e("s_add_u32 s3, s3, s4")
    e(f"s_add_u32 {s(SOUT)}, {s(sOUT)}, s3")
    e(f"s_addc_u32 {s(SOUT + 1)}, {s(sOUT + 1)}, 0")
    e(f"s_sub_u32 {s(SOUT + 2)}, {1024 * 2304}, s3")
    e(f"s_mov_b32 {s(SOUT + 3)}, 0x20000")
    e(f"s_mul_i32 {s(sM0)}, {s(sW)}, 9216")
    if int(os.environ.get("K2ROT", "1")):
        e(f"s_lshl_b32 {s(sROT)}, {s(sCT)}, 1")
        e(f"s_add_u32 {s(sROT)}, {s(sROT)}, {s(sB)}")
    else:
        e(f"s_mov_b32 {s(sROT)}, 0")
    e(f"s_add_u32 s4, {s(sWS)}, {56 << 20}")
    e(f"s_addc_u32 s5, {s(sWS + 1)}, 0")
    e(f"s_load_dword {s(sNON)}, s[4:5], 0")
    e("s_waitcnt lgkmcnt(0)")

    def issue_parts(st):
        slot = (st % NS) * STG
        g = []
        for n in range(9):
            x = []
            if n == 0:
                x.append(f"s_add_u32 {s(sOOFF2)}, {s(sROT)}, {st}")
                x.append(f"s_and_b32 {s(sOOFF2)}, {s(sOOFF2)}, 7")
                x.append(f"s_mul_i32 {s(sWOFF)}, {s(sOOFF2)}, {128 * 1152}")
            if n % 4 == 0:
                x.append(f"s_add_u32 m0, {s(sM0)}, {slot + 1024 * n}")
                x.append("s_nop 0")
            x.append(f"buffer_load_dwordx4 {v(vOW + n)}, {s(SW, 4)}, {s(sWOFF)} offen offset:{1024 * (n % 4)} lds")
            g.append(x)
        for ks in range(4):
            for rh in range(2):
                x = []
                if ks == 0 and rh == 0:
                    x.append(f"s_lshl_b32 {s(sOOFF)}, {s(sOOFF2)}, 12")
                r = vOB + 32 * (st % 4) + 8 * ks + 4 * rh
                x.append(f"buffer_load_dwordx4 {v(r, 4)}, {v(vOO + rh)}, {s(SOo, 4)}, {s(sOOFF)} offen offset:{1024 * ks}")
                g.append(x)
        return g

    PRE = int(os.environ.get("K2PRE", "1"))
    for st in range(PRE):
        for g in issue_parts(st):
            for i in g:
                e(i)
    for st in range(8):
        e(f"s_waitcnt vmcnt({17 * min(2, 7 - st) if st else 17 * (PRE - 1)})")
        e("s_barrier")
        stamp()
        parts = issue_parts(st + 3) if st + 3 < 8 else []
        if st == 0:
            for st2 in range(PRE, 3):
                for g in issue_parts(st2):
                    for i in g:
                        e(i)
        e(f"v_add_u32 {v(vTRA)}, {(st % NS) * STG}, {v(vTRB)}")

        def rd(f):
            ks, nb = f // 9, f % 9
            r = vFR + 4 * (f % NFR)
            e(f"ds_read_b64_tr_b16 {v(r, 2)}, {v(vTRA)} offset:{32 * ks * 288 + 32 * nb}")
            e(f"ds_read_b64_tr_b16 {v(r + 2, 2)}, {v(vTRA)} offset:{(32 * ks + 16) * 288 + 32 * nb}")

        for f in range(NFR - 1):
            rd(f)
        for f in range(36):
            ks, nb = f // 9, f % 9
            inflight = min(NFR - 1, 36 - f)
            e(f"s_waitcnt lgkmcnt({2 * (inflight - 1)})")
            r = vFR + 4 * (f % NFR)
            for rh in range(2):
                a = vACC + 8 * nb + 4 * rh
                c = "0" if (st == 0 and ks == 0) else v(a, 4)
                ob = vOB + 32 * (st % 4) + 8 * ks + 4 * rh
                e(f"v_mfma_f32_16x16x32_bf16 {v(a, 4)}, {v(r, 4)}, {v(ob, 4)}, {c}")
            if f + NFR - 1 < 36:
                rd(f + NFR - 1)
            if f % 2 == 0 and f // 2 < len(parts):
                for i in parts[f // 2]:
                    e(i)
    stamp()
    vNB = 6
    vCK = 10
    e(f"s_mul_i32 s3, {s(sW)}, 18432")
    e(f"v_lshlrev_b32 {v(vT0)}, 4, {v(vLANE)}")
    e(f"v_add_u32 {v(vPO)}, s3, {v(vT0)}")
    for k in range(4):
        e(f"s_bfe_u32 s3, {s(sNON)}, {(8 << 16) | (8 * k):#x}")
        e(f"v_mov_b32 {v(vNB + k)}, s3")
    e("s_movk_i32 s5, 0xff")
    e(f"v_and_b32 {v(vT1)}, 15, {v(vLANE)}")
    e(f"v_mul_u32_u24 {v(vT1)}, 2304, {v(vT1)}")
    e(f"v_lshrrev_b32 {v(vT2)}, 4, {v(vLANE)}")
    e(f"v_lshl_add_u32 {v(vT1)}, {v(vT2)}, 3, {v(vT1)}")
    e(f"v_add_u32 {v(vT2)}, {16 * 2304}, {v(vT1)}")
    e(f"s_mov_b32 {s(sT)}, 0")
    for d in range(1, 4):
        e(f"s_cmp_eq_u32 {s(sSP)}, {d}")
        e(f"s_cbranch_scc1 L_op_red{d}")
    n0 = nst[0]
    for d in range(4):
        nst[0] = n0
        e(f"L_op_red{d}:")
        own = [f for f in range(18) if f % 4 == d]
        for f in range(18):
            if f % 4 == d:
                continue
            for k in range(4):
                e(f"v_bfi_b32 {v(vACC + 4 * f + k)}, s5, {v(vNB + k)}, {v(vACC + 4 * f + k)}")
            e(f"s_mov_b32 s3, {(d * 4 * 18 + f) * 1024}")
            e(f"buffer_store_dwordx4 {v(vACC + 4 * f, 4)}, {v(vPO)}, {s(SP, 4)}, s3 offen sc1")
        stamp()
        e(f"L_op_retry{d}:")
        regs = []
        for k in range(1, 4):
            src = (d + k) & 3
            for i, f in enumerate(own):
                r = 96 + 4 * len(regs)
                regs.append((r, f))
                e(f"s_mov_b32 s3, {(src * 4 * 18 + f) * 1024}")
                e(f"buffer_load_dwordx4 {v(r, 4)}, {v(vPO)}, {s(SP, 4)}, s3 offen sc1")
        e(f"v_mov_b32 {v(vCK)}, 0")
        e(f"s_add_u32 {s(sT)}, {s(sT)}, 1")
        e("s_waitcnt vmcnt(0)")
        for r, f in regs:
            for k in range(4):
                e(f"v_xor_b32 {v(vT3)}, {v(r + k)}, {v(vNB + k)}")
                e(f"v_and_or_b32 {v(vCK)}, {v(vT3)}, s5, {v(vCK)}")
        e(f"v_cmp_ne_u32 vcc, 0, {v(vCK)}")
        e(f"s_cbranch_vccz L_op_ok{d}")
        e(f"s_cmp_lt_u32 {s(sT)}, 0x20000")
        e(f"s_cbranch_scc1 L_op_retry{d}")
        e(f"L_op_ok{d}:")
        stamp()
        for r, f in regs:
            for k in range(4):
                e(f"v_add_f32 {v(vACC + 4 * f + k)}, {v(vACC + 4 * f + k)}, {v(r + k)}")
        for f in own:
            nb, rh = f >> 1, f & 1
            a = vACC + 4 * f
            e(f"v_cvt_pk_bf16_f32 {v(a)}, {v(a)}, {v(a + 1)}")
            e(f"v_cvt_pk_bf16_f32 {v(a + 1)}, {v(a + 2)}, {v(a + 3)}")
            e(f"buffer_store_dwordx2 {v(a, 2)}, {v(vT1 if rh == 0 else vT2)}, {s(SOUT, 4)}, 0 offen offset:{32 * nb}")
        if d < 3:
            e("s_branch L_op_fin")
    e("L_op_fin:")
    if DIAG:
        e("s_waitcnt vmcnt(0)")
        e(f"s_add_u32 s3, s2, {s(sW)}")
        e("s_cmp_eq_u32 s3, 0")
        e("s_cbranch_scc0 L_op_end")
        e("s_memrealtime s[92:93]")
        e(f"s_add_u32 s4, {s(sWS)}, {57 << 20}")
        e(f"s_addc_u32 s5, {s(sWS + 1)}, 0")
        e("s_mov_b32 s6, 4096")
        e("s_mov_b32 s7, 0x20000")
        e(f"v_lshlrev_b32 v1, 3, {v(vLANE)}")
        for i in range(8):
            e(f"buffer_load_dwordx2 v[{100 + 2 * i}:{101 + 2 * i}], v1, s[4:7], 0 offen offset:{512 * i}")
        e("s_waitcnt vmcnt(0) lgkmcnt(0)")
        e("v_readfirstlane_b32 s94, v100")
        for i in range(16):
            e(f"v_subrev_u32 v{100 + i}, s94, v{100 + i}")
        e("v_max_i32 v120, v101, v103")
        e("v_max3_i32 v120, v120, v105, v107")
        e("v_max_i32 v121, v109, v111")
        e("v_max3_i32 v121, v121, v113, v115")
        e("v_max3_i32 v122, v100, v102, v104")
        e("v_max3_i32 v122, v122, v106, v108")
        e("v_max3_i32 v122, v122, v110, v112")
        e("v_max_i32 v122, v122, v114")
        e("v_min3_i32 v123, v101, v103, v105")
        e("v_min_i32 v123, v123, v107")
        e("v_mov_b32 v124, 0")
        for k, r in enumerate((120, 121, 122)):
            e(f"v_mov_b32 v125, {4 * k}")
            e(f"buffer_atomic_smax v{r}, v125, {s(SD, 4)}, 0 offen")
        e("s_sub_u32 s90, s90, s94")
        e("s_sub_u32 s92, s92, s94")
        e("v_mov_b32 v126, s90")
        e("v_mov_b32 v127, s92")
        e("v_mov_b32 v125, 16")
        e(f"buffer_store_dwordx2 v[126:127], v125, {s(SD, 4)}, 0 offen")
        e("s_waitcnt vmcnt(0)")
    if STAMP:
        e("s_waitcnt vmcnt(0)")
        stamp()
        stamp(True)
        e(f"s_cmp_eq_u32 {s(sW)}, 0")
        e("s_cbranch_scc0 L_op_end")
        e(f"s_lshl_b32 s3, s2, 10")
        e(f"s_add_u32 s3, s3, {64 << 20}")
        e(f"s_add_u32 {s(SOo)}, {s(sWS)}, s3")
        e(f"s_addc_u32 {s(SOo + 1)}, {s(sWS + 1)}, 0")
        e(f"s_mov_b32 {s(SOo + 2)}, 256")
        e("v_mov_b32 v1, 0")
        for i in range(nst[0]):
            e(f"v_mov_b32 v2, {s(56 + 2 * i)}")
            e(f"v_mov_b32 v3, {s(57 + 2 * i)}")
            e(f"buffer_store_dwordx2 v[2:3], v1, {s(SOo, 4)}, 0 offen offset:{8 * i}")
            e("s_waitcnt vmcnt(0)")
        print("nstamps", nst[0])
    e("L_op_end:")
    e("s_endpgm")


def main():
    hdr = open(f"cdna_kernels/{NAME}.s.ref").read().split("\n")
    head = [x for x in hdr if x.startswith(";") and "@launch" not in x and "Override" not in x and "grid=ceil" not in x]
    out = head[:]
    if ONLY != "oproj":
        out.append("; @launch kernel=attn_kernel grid=(512,1,1) block=(256,1,1) lds=%d" % (SLOT * NSLOT))
    if ONLY != "attn":
        out.append("; @launch kernel=oproj_kernel grid=(256,1,1) block=(256,1,1) lds=147456")
    out.append('.amdgcn_target "amdgcn-amd-amdhsa--gfx950"')
    out.append(".text")
    out.append(".globl attn_kernel")
    out.append(".p2align 8")
    out.append(".type attn_kernel,@function")
    gen_attn()
    L.append(".globl oproj_kernel")
    L.append(".p2align 8")
    L.append(".type oproj_kernel,@function")
    gen_oproj()
    out += L
    out.append('.section .rodata,"a"')
    out.append(".p2align 6")
    out.append(""".amdhsa_kernel attn_kernel
  .amdhsa_next_free_vgpr 256
  .amdhsa_next_free_sgpr 102
  .amdhsa_accum_offset 256
  .amdhsa_group_segment_fixed_size 0
  .amdhsa_kernarg_size 104
  .amdhsa_user_sgpr_count 2
  .amdhsa_user_sgpr_kernarg_segment_ptr 1
  .amdhsa_system_sgpr_workgroup_id_x 1
.end_amdhsa_kernel
.p2align 6
.amdhsa_kernel oproj_kernel
  .amdhsa_next_free_vgpr 256
  .amdhsa_next_free_sgpr 102
  .amdhsa_accum_offset 256
  .amdhsa_group_segment_fixed_size 0
  .amdhsa_kernarg_size 104
  .amdhsa_user_sgpr_count 2
  .amdhsa_user_sgpr_kernarg_segment_ptr 1
  .amdhsa_system_sgpr_workgroup_id_x 1
.end_amdhsa_kernel""")
    open(OUT, "w").write("\n".join(out) + "\n")


if __name__ == "__main__":
    main()
```

```python
import sys, os
NOCOMP = int(os.environ.get("NOCOMP", "0"))

NAME = "concat_heads__mha_block_cached__mha_block_cached__near_ridge"
OUT = f"cdna_kernels/{NAME}.s"

L = []
INSM = [0]


K2X = os.environ.get("K2X", "")


def e(s=""):
    if K2X == "noW" and s.startswith("buffer_load_dwordx4") and s.endswith("lds"):
        s = "s_nop 0"
    if K2X == "noO" and s.startswith("buffer_load_dwordx4") and "s[12:15], s44" in s:
        s = "s_nop 0"
    if K2X and s.startswith("s_waitcnt vmcnt(") and not s.startswith("s_waitcnt vmcnt(0)"):
        n = int(s[16:s.index(")")])
        s = f"s_waitcnt vmcnt({n // 17 * (8 if K2X == 'noW' else 9)})"
    if NOCOMP & 1 and s.startswith("v_mfma"):
        return
    if NOCOMP & 2 and s.startswith("ds_read"):
        return
    if NOCOMP & 4 and INSM[0] and s.startswith("v_"):
        return
    L.append("    " + s if s and not s.endswith(":") else s)


def v(i, n=1):
    return f"v{i}" if n == 1 else f"v[{i}:{i + n - 1}]"


def s(i, n=1):
    return f"s{i}" if n == 1 else f"s[{i}:{i + n - 1}]"


SLOT = 16384
NSLOT = int(os.environ.get("NSLOT", "5"))
OUT = os.environ.get("OUT", OUT)
VMW = 4 * (NSLOT - 2)
NT = " nt" if os.environ.get("NT", "1") == "1" else ""
ONLY = os.environ.get("ONLY", "")
import struct


def f32bits(x):
    return struct.unpack("<I", struct.pack("<f", x))[0]


def gen_attn():
    SK, SV, SW, SX, SO = 8, 12, 16, 20, 24
    sPTR = 28
    sWS = 36
    sH, sB, sBLK = 38, 39, 40
    sRD, sWR, sWAVE = 41, 42, 43
    sKOFF, sVOFF, sWOFF = 44, 45, 46
    sCNT = 47
    sC = 48
    sD0, sD1 = 49, 51
    sW = 50
    sTO = 52
    sXOFF = 53
    sKS, sVS = 54, 55
    vTRA = 1
    vOK = 5
    vOV = 9
    vT0, vT1, vT2, vT3 = 10, 11, 12, 13
    vLANE = 14
    vM, vLs, vAL, vMC = 15, 16, 17, 18
    vU0, vU1, vU2, vU3 = 19, 20, 21, 22
    vOO = 23
    vACC = 24
    vQ = 88
    vS = [120, 152]
    vP = 184
    vKF = 200
    NKF = 4
    vFR = 216
    NFR = 4
    vKA = 232
    vNM = 240
    vDW = 247
    sFLAG = 95
    THR = 8.0
    vR = 120
    vX = 184
    vOW = 200
    vOX = 204
    vXA = 208

    STAMP = int(os.environ.get("STAMP", "0"))
    PRIO = int(os.environ.get("PRIO", "0"))
    nst = [0]

    def stamp(real=False):
        if not STAMP:
            return
        r = 56 + 2 * nst[0]
        nst[0] += 1
        assert r + 1 < 100
        e(f"{'s_memrealtime' if real else 's_memtime'} {s(r, 2)}")
        e("s_waitcnt lgkmcnt(0)")

    vmq = []
    lgq = []

    def vm_wait(tag):
        idx = max([i for i, t in enumerate(vmq) if t == tag], default=-1)
        if idx < 0:
            return
        n = len(vmq) - 1 - idx
        e(f"s_waitcnt vmcnt({n})")
        del vmq[:idx + 1]

    def lg_wait(tag):
        idx = max([i for i, t in enumerate(lgq) if t == tag], default=-1)
        if idx < 0:
            return
        n = len(lgq) - 1 - idx
        assert n <= 15
        e(f"s_waitcnt lgkmcnt({n})")
        del lgq[:idx + 1]

    def lg_all():
        if lgq:
            e("s_waitcnt lgkmcnt(0)")
            del lgq[:]

    e("attn_kernel:")
    e("s_cmp_ge_u32 s2, 512")
    e("s_cbranch_scc1 L_attn_end")
    DIAG = int(os.environ.get("DIAG", "0"))
    if DIAG:
        e("s_memrealtime s[90:91]")
        e("s_waitcnt lgkmcnt(0)")
    stamp(True)
    stamp()
    MAP = int(os.environ.get("MAP", "1"))
    if MAP == 0:
        e(f"s_lshr_b32 {s(sBLK)}, s2, 8")
        e(f"s_and_b32 {s(sH)}, s2, 31")
        e(f"s_bfe_u32 {s(sB)}, s2, 0x30005")
    else:
        e(f"s_bfe_u32 {s(sBLK)}, s2, 0x10002")
        e(f"s_and_b32 s3, s2, 3")
        e(f"s_bfe_u32 s4, s2, 0x30003")
        e(f"s_lshl_b32 s3, s3, 3")
        e(f"s_or_b32 {s(sH)}, s3, s4")
        e(f"s_lshr_b32 {s(sB)}, s2, 6")
    e(f"s_mul_i32 s3, {s(sBLK)}, 40")
    e("s_add_u32 s4, s0, s3")
    e("s_addc_u32 s5, s1, 0")
    e(f"s_load_dwordx8 {s(sPTR, 8)}, s[4:5], 0")
    e(f"s_load_dwordx2 {s(sWS, 2)}, s[0:1], 96")
    e(f"s_load_dwordx2 s[96:97], s[0:1], 88")
    if PRIO:
        e(f"s_cmp_lt_u32 s2, 256")
        e("s_cbranch_scc0 L_attn_noprio")
        e(f"s_setprio {PRIO}")
        e("L_attn_noprio:")
    e(f"v_and_b32 {v(vLANE)}, 63, v0")
    e(f"v_lshrrev_b32 {v(vT0)}, 6, v0")
    e("s_nop 0")
    e(f"v_readfirstlane_b32 {s(sW)}, {v(vT0)}")
    e(f"s_lshl_b32 {s(sWAVE)}, {s(sW)}, 12")
    e(f"v_lshlrev_b32 {v(vDW)}, 12, {v(vT0)}")
    e(f"v_lshl_add_u32 {v(vDW)}, {v(vLANE)}, 4, {v(vDW)}")
    e(f"v_lshrrev_b32 {v(vT1)}, 4, {v(vLANE)}")
    e(f"v_and_b32 {v(vT2)}, 15, {v(vLANE)}")
    e(f"v_lshl_add_u32 {v(vT3)}, {v(vT0)}, 4, {v(vT1)}")
    e(f"v_lshlrev_b32 {v(vOV)}, 2, {v(vT1)}")
    e(f"v_xor_b32 {v(vOV)}, {v(vOV)}, {v(vT2)}")
    e(f"v_lshlrev_b32 {v(vOV)}, 4, {v(vOV)}")
    for n in range(4):
        e(f"v_add_u32 {v(vOW + n)}, {4 * n}, {v(vT3)}")
        e(f"v_lshl_add_u32 {v(vOW + n)}, {v(vOW + n)}, 13, {v(vOV)}")
        if n:
            e(f"v_subrev_u32 {v(vOW + n)}, {1024 * n}, {v(vOW + n)}")
    e(f"v_lshl_add_u32 {v(vOV)}, {v(vT3)}, 8, {v(vOV)}")
    for n in range(4):
        e(f"v_add_u32 {v(vOK + n)}, {4 * n}, {v(vT1)}")
        e(f"v_xor_b32 {v(vOK + n)}, {v(vOK + n)}, {v(vT2)}")
        e(f"v_lshlrev_b32 {v(vOK + n)}, 4, {v(vOK + n)}")
        e(f"v_lshl_add_u32 {v(vOK + n)}, {v(vT3)}, 8, {v(vOK + n)}")
    e(f"v_lshrrev_b32 {v(vT1)}, 3, {v(vLANE)}")
    e(f"v_lshl_add_u32 {v(vT1)}, {v(vT0)}, 5, {v(vT1)}")
    e(f"v_mul_u32_u24 {v(vT1)}, 1152, {v(vT1)}")
    e(f"v_lshrrev_b32 {v(vT2)}, 4, {v(vLANE)}")
    e(f"v_and_b32 {v(vT3)}, 7, {v(vLANE)}")
    for n in range(4):
        e(f"v_add_u32 {v(vOX + n)}, {4 * n}, {v(vT2)}")
        e(f"v_and_b32 {v(vOX + n)}, 7, {v(vOX + n)}")
        e(f"v_xor_b32 {v(vOX + n)}, {v(vOX + n)}, {v(vT3)}")
        e(f"v_lshl_add_u32 {v(vOX + n)}, {v(vOX + n)}, 4, {v(vT1)}")
        e(f"v_add_u32 {v(vOX + n)}, {8 * 1152 * n - 1024 * n}, {v(vOX + n)}")
    e(f"v_and_b32 {v(vT1)}, 31, {v(vLANE)}")
    e(f"v_bfe_u32 {v(vT2)}, {v(vLANE)}, 1, 3")
    e(f"v_lshrrev_b32 {v(vT3)}, 5, {v(vLANE)}")
    e(f"v_xor_b32 {v(vT2)}, {v(vT2)}, {v(vT3)}")
    e(f"v_lshl_add_u32 {v(vT1)}, {v(vT0)}, 5, {v(vT1)}")
    e(f"v_lshlrev_b32 {v(vT1)}, 7, {v(vT1)}")
    for u in range(4):
        e(f"v_xor_b32 {v(vT3)}, {2 * u}, {v(vT2)}")
        e(f"v_lshl_add_u32 {v(vXA + u)}, {v(vT3)}, 4, {v(vT1)}")

    def trbase(sigma, slot):
        e(f"v_lshrrev_b32 {v(vT0)}, 5, {v(vLANE)}")
        e(f"v_bfe_u32 {v(vT1)}, {v(vLANE)}, 2, 2")
        e(f"v_lshl_add_u32 {v(vT0)}, {v(vT0)}, 3, {v(vT1)}")
        e(f"v_lshlrev_b32 {v(vT0)}, 8, {v(vT0)}")
        e(f"v_bfe_u32 {v(vT2)}, {v(vLANE)}, 4, 1")
        e(f"v_lshl_add_u32 {v(vT0)}, {v(vT2)}, 5, {v(vT0)}")
        if sigma:
            e(f"v_and_b32 {v(vT2)}, 1, {v(vLANE)}")
            e(f"v_bfe_u32 {v(vT3)}, {v(vLANE)}, 1, 1")
        else:
            e(f"v_bfe_u32 {v(vT2)}, {v(vLANE)}, 1, 1")
            e(f"v_and_b32 {v(vT3)}, 1, {v(vLANE)}")
        e(f"v_lshl_add_u32 {v(vT0)}, {v(vT2)}, 4, {v(vT0)}")
        e(f"v_lshl_add_u32 {v(vT0)}, {v(vT3)}, 3, {v(vT0)}")
        e(f"v_add_u32 {v(vT0)}, {slot * SLOT}, {v(vT0)}")
        for D in range(4):
            e(f"v_xor_b32 {v(vT2)}, {D}, {v(vT1)}")
            e(f"v_lshl_add_u32 {v(vTRA + D)}, {v(vT2)}, 6, {v(vT0)}")

    for u in range(4):
        e(f"v_add_u32 {v(vXA + u)}, {3 * SLOT}, {v(vXA + u)}")
    trbase(True, 0)

    e("s_waitcnt lgkmcnt(0)")
    e(f"s_lshl_b32 s3, {s(sB)}, 5")
    e(f"s_add_u32 s3, s3, {s(sH)}")
    e("s_lshl_b32 s3, s3, 18")
    for (S, p) in ((SK, sPTR + 2), (SV, sPTR + 4)):
        e(f"s_add_u32 {s(S)}, {s(p)}, s3")
        e(f"s_addc_u32 {s(S + 1)}, {s(p + 1)}, 0")
        e(f"s_mov_b32 {s(S + 2)}, 262144")
        e(f"s_mov_b32 {s(S + 3)}, 0x20000")
    e(f"s_mul_i32 s3, {s(sB)}, 147456")
    e(f"s_add_u32 {s(SX)}, {s(sPTR)}, s3")
    e(f"s_addc_u32 {s(SX + 1)}, {s(sPTR + 1)}, 0")
    e(f"s_mov_b32 {s(SX + 2)}, 147456")
    e(f"s_mov_b32 {s(SX + 3)}, 0x20000")
    e(f"s_lshl_b32 s3, {s(sH)}, 8")
    e(f"s_add_u32 {s(SW)}, {s(sPTR + 6)}, s3")
    e(f"s_addc_u32 {s(SW + 1)}, {s(sPTR + 7)}, 0")
    e(f"s_sub_u32 {s(SW + 2)}, {576 * 8192}, s3")
    e(f"s_mov_b32 {s(SW + 3)}, 0x20000")
    e(f"s_lshl_b32 s3, {s(sBLK)}, 3")
    e(f"s_add_u32 s3, s3, {s(sB)}")
    e("s_lshl_b32 s3, s3, 20")
    e(f"s_lshl_b32 s4, {s(sH)}, 12")
    e("s_add_u32 s3, s3, s4")
    e(f"s_add_u32 {s(SO)}, {s(sWS)}, s3")
    e(f"s_addc_u32 {s(SO + 1)}, {s(sWS + 1)}, 0")
    e(f"s_sub_u32 {s(SO + 2)}, {1 << 20}, s4")
    e(f"s_mov_b32 {s(SO + 3)}, 0x20000")
    e(f"s_mov_b32 {s(sC)}, {f32bits(128 ** -0.5 * 1.4426950408889634):#x}")
    e("s_mov_b32 s98, 256")
    e("s_mov_b32 s99, 0x20000")
    e(f"s_mov_b32 {s(sWR)}, 0")
    e(f"s_mov_b32 {s(sKOFF)}, 0")
    e(f"s_mov_b32 {s(sVOFF)}, 0")
    QROT = int(os.environ.get("QROT", "1"))
    if QROT:
        if MAP == 0:
            e(f"s_lshr_b32 s3, {s(sH)}, 3")
            e("s_lshl_b32 s3, s3, 1")
        else:
            e(f"s_and_b32 s3, {s(sH)}, 7")
        e(f"s_add_u32 s3, s3, {s(sB)}")
        e("s_cmp_ge_u32 s3, 9")
        e("s_cselect_b32 s4, 9, 0")
        e("s_sub_u32 s3, s3, s4")
        e(f"s_lshl_b32 {s(sWOFF)}, s3, 19")
        e(f"s_lshl_b32 {s(sXOFF)}, s3, 7")
    else:
        e(f"s_mov_b32 {s(sWOFF)}, 0")
        e(f"s_mov_b32 {s(sXOFF)}, 0")

    def adv_wr():
        e(f"s_add_u32 {s(sWR)}, {s(sWR)}, {SLOT}")
        e(f"s_cmp_eq_u32 {s(sWR)}, {SLOT * NSLOT}")
        e(f"s_cselect_b32 {s(sWR)}, 0, {s(sWR)}")

    def dma_parts(kind, tag):
        g = []
        first = [f"s_add_u32 m0, {s(sWR)}, {s(sWAVE)}",
                 f"s_add_u32 {s(sWR)}, {s(sWR)}, {SLOT}"]
        for n in range(4):
            if kind == "W":
                i = f"buffer_load_dwordx4 {v(vOW + n)}, {s(SW, 4)}, {s(sWOFF)} offen offset:{1024 * n} lds"
            elif kind == "X":
                i = f"buffer_load_dwordx4 {v(vOX + n)}, {s(SX, 4)}, {s(sXOFF)} offen offset:{1024 * n} lds"
            elif kind == "K":
                i = f"buffer_load_dwordx4 {v(vOK + n)}, {s(SK, 4)}, {s(sKOFF)} offen offset:{1024 * n}{NT} lds"
            else:
                i = f"buffer_load_dwordx4 {v(vOV)}, {s(SV, 4)}, {s(sVOFF)} offen offset:{1024 * n}{NT} lds"
            g.append((first if n == 0 else []) + [i])
        so, inc = {"W": (sWOFF, 64 * 8192), "X": (sXOFF, 128), "K": (sKOFF, SLOT), "V": (sVOFF, SLOT)}[kind]
        g[-1] += [f"s_add_u32 {s(so)}, {s(so)}, {inc}",
                  f"s_cmp_eq_u32 {s(sWR)}, {SLOT * NSLOT}",
                  f"s_cselect_b32 {s(sWR)}, 0, {s(sWR)}"]
        if kind in "XW":
            g[-1] += [f"s_cmp_eq_u32 {s(so)}, {9 * inc}",
                      f"s_cselect_b32 {s(so)}, 0, {s(so)}"]
        return g

    def emit_group(g, tag):
        for i in g:
            e(i)
            if i.startswith("buffer_load"):
                vmq.append(tag)

    def dma(kind, tag):
        for g in dma_parts(kind, tag):
            emit_group(g, tag)

    def rload(i, kind):
        for n in range(4):
            r = vR + 16 * i + 4 * n
            if kind == "K":
                e(f"buffer_load_dwordx4 {v(r, 4)}, {v(vOK + n)}, {s(SK, 4)}, {s(sKOFF)} offen offset:{1024 * n}{NT}")
            else:
                e(f"buffer_load_dwordx4 {v(r, 4)}, {v(vOV)}, {s(SV, 4)}, {s(sVOFF)} offen offset:{1024 * n}{NT}")
            vmq.append(f"R{i}")
        so = sKOFF if kind == "K" else sVOFF
        e(f"s_add_u32 {s(so)}, {s(so)}, {SLOT}")

    def rdump(i):
        vm_wait(f"R{i}")
        e(f"v_add_u32 {v(vT0)}, {s(sWR)}, {v(vDW)}")
        adv_wr()
        for n in range(4):
            e(f"ds_write_b128 {v(vT0)}, {v(vR + 16 * i + 4 * n, 4)} offset:{1024 * n}")
            lgq.append("dump")

    RK = ["K", "K", "V", "K"]

    def tr_rd(f, nfr=NFR):
        u, D = f >> 2, f & 3
        r = vFR + 4 * (f % nfr)
        e(f"ds_read_b64_tr_b16 {v(r, 2)}, {v(vTRA + D)} offset:{4096 * u}")
        e(f"ds_read_b64_tr_b16 {v(r + 2, 2)}, {v(vTRA + D)} offset:{4096 * u + 1024}")
        lgq.extend([f"F{f}", f"F{f}"])

    QFR = 88
    NQF = 8

    def q_rd(f):
        u, D = f >> 2, f & 3
        r = QFR + 4 * (f % NQF)
        e(f"ds_read_b64_tr_b16 {v(r, 2)}, {v(vTRA + D)} offset:{4096 * u}")
        e(f"ds_read_b64_tr_b16 {v(r + 2, 2)}, {v(vTRA + D)} offset:{4096 * u + 1024}")
        lgq.extend([f"F{f}", f"F{f}"])

    def qphase(RSCHED):
        useR = RSCHED is not None
        RSCHED = RSCHED or {}

        def parts(kind, slot, tag):
            g = dma_parts(kind, tag)
            g[0] = [f"s_mov_b32 {s(sWR)}, {slot * SLOT}"] + g[0]
            return [("g", x, tag) for x in g]

        def kv_acts(i):
            if useR:
                return [("dump", i)]
            return parts(RK[i], i, f"KV{i}")

        def do(x):
            if x[0] == "g":
                emit_group(x[1], x[2])
            elif x[0] == "dump":
                e(f"s_mov_b32 {s(sWR)}, {x[1] * SLOT}")
                rdump(x[1])
            elif x[0] == "lgw":
                lg_wait(x[1])
            else:
                rload(x[1], RK[x[1]])

        for i in RSCHED.get(-2, []):
            rload(i, RK[i])
        for x in parts("X", 3, "X0") + parts("W", 0, "W0") + parts("X", 4, "X1") + parts("W", 1, "W1") + parts("W", 2, "W2"):
            do(x)
        for i in RSCHED.get(-1, []):
            rload(i, RK[i])
        for q in range(9):
            vm_wait(f"X{q}")
            vm_wait(f"W{q}")
            lg_all()
            e("s_barrier")
            stamp()
            e(f"ds_read_b128 {v(vX, 4)}, {v(vXA)}")
            lgq.append("x0")
            for f in range(2):
                q_rd(f)
            for u in range(1, 4):
                e(f"ds_read_b128 {v(vX + 4 * u, 4)}, {v(vXA + u)}")
                lgq.append(f"x{u}")
            for f in range(2, 5):
                q_rd(f)
            nxt = 5
            acts = []
            if 1 <= q <= 6:
                acts += parts("W", (q + 2) % 3, f"W{q + 2}")
            if q >= 7:
                acts += kv_acts(q - 7)
            if q <= 6:
                acts += [("lgw", "x3")] + parts("X", 3 + q % 2, f"X{q + 2}")
            for i in RSCHED.get(q, []):
                acts.append(("rload", i))
            dx = SLOT if q % 2 == 0 else -SLOT
            for f in range(16):
                u, D = f >> 2, f & 3
                lg_wait(f"F{f}")
                if D == 0:
                    lg_wait(f"x{u}")
                r = QFR + 4 * (f % NQF)
                c = "0" if (q == 0 and u == 0) else v(vACC + 16 * D, 16)
                e(f"v_mfma_f32_32x32x16_bf16 {v(vACC + 16 * D, 16)}, {v(r, 4)}, {v(vX + 4 * u, 4)}, {c}")
                while nxt < 16 and nxt <= f + NQF - 2 and len(lgq) <= 12:
                    q_rd(nxt)
                    nxt += 1
                    if nxt > f + 6:
                        break
                if f == 0 and q < 8:
                    for u2 in range(4):
                        e(f"v_add_u32 {v(vXA + u2)}, {dx & 0xffffffff:#x}, {v(vXA + u2)}")
                if acts and (acts[0][0] != "dump" or len(lgq) <= 11):
                    x = acts.pop(0)
                    do(x)
                    if x[0] == "lgw":
                        do(acts.pop(0))
            assert nxt == 16
            for x in acts:
                do(x)
            if q < 8:
                dw = ((q + 1) % 3 - q % 3) * SLOT
                for D in range(4):
                    e(f"v_add_u32 {v(vTRA + D)}, {dw & 0xffffffff:#x}, {v(vTRA + D)}")
        vm_wait("KV0")
        lg_all()
        e("s_barrier")
        stamp()
        for x in kv_acts(2) + kv_acts(3):
            do(x)
        lg_all()
        del vmq[:]

    RA = eval(os.environ.get("RA", "None"))
    RB = eval(os.environ.get("RB", "None"))
    if int(os.environ.get("XWPF", "0")):
        e("s_lshr_b32 s3, s2, 3")
        e("s_mul_i32 s4, s3, 18432")
        e(f"s_add_u32 s92, {s(sPTR)}, s4")
        e(f"s_addc_u32 s93, {s(sPTR + 1)}, 0")
        e("s_mov_b32 s94, 18432")
        e("s_mov_b32 s95, 0x20000")
        e(f"s_mul_i32 s4, s3, {9 * 8192}")
        e("s_and_b32 s3, s2, 3")
        e("s_lshl_b32 s3, s3, 11")
        e("s_add_u32 s4, s4, s3")
        e(f"s_add_u32 s4, {s(sPTR + 6)}, s4")
        e(f"s_addc_u32 s5, {s(sPTR + 7)}, 0")
        e(f"s_mov_b32 s6, {8 * 8192 + 2048}")
        e("s_mov_b32 s7, 0x20000")
        e(f"v_lshlrev_b32 {v(vT0)}, 4, v0")
        e(f"v_lshrrev_b32 {v(vT1)}, 7, v0")
        e(f"v_and_b32 {v(vT2)}, 127, v0")
        e(f"v_lshlrev_b32 {v(vT2)}, 4, {v(vT2)}")
        e(f"v_lshl_add_u32 {v(vT1)}, {v(vT1)}, 13, {v(vT2)}")
        for i in range(5):
            e(f"s_movk_i32 s3, {4096 * i}")
            e(f"buffer_load_dwordx4 {v(vACC + 8 * i, 4)}, {v(vT0)}, s[92:95], s3 offen")
            e(f"s_mov_b32 s3, {16384 * i}")
            e(f"buffer_load_dwordx4 {v(vACC + 8 * i + 4, 4)}, {v(vT1)}, s[4:7], s3 offen")
        if int(os.environ.get("XWPFW", "1")):
            e("s_waitcnt vmcnt(0)")
    e(f"s_cmp_lt_u32 s2, 256")
    e("s_cbranch_scc0 L_attn_qb")
    n0 = nst[0]
    qphase(RA)
    e("s_branch L_attn_qdone")
    e("L_attn_qb:")
    nst[0] = n0
    qphase(RB)
    e("L_attn_qdone:")
    trbase(False, 2)
    e(f"v_and_b32 {v(vT0)}, 0x13, {v(vLANE)}")
    e(f"v_bfe_u32 {v(vT1)}, {v(vLANE)}, 2, 1")
    e(f"v_lshl_or_b32 {v(vT0)}, {v(vT1)}, 3, {v(vT0)}")
    e(f"v_bfe_u32 {v(vT1)}, {v(vLANE)}, 3, 1")
    e(f"v_lshl_or_b32 {v(vT0)}, {v(vT1)}, 2, {v(vT0)}")
    e(f"v_and_b32 {v(vT1)}, 15, {v(vT0)}")
    e(f"v_lshrrev_b32 {v(vT2)}, 5, {v(vLANE)}")
    e(f"v_xor_b32 {v(vT1)}, {v(vT1)}, {v(vT2)}")
    e(f"v_lshlrev_b32 {v(vT0)}, 8, {v(vT0)}")
    e(f"v_add_u32 {v(vT0)}, {0}, {v(vT0)}")
    for t in range(8):
        e(f"v_xor_b32 {v(vT2)}, {2 * t}, {v(vT1)}")
        e(f"v_lshl_add_u32 {v(vKA + t)}, {v(vT2)}, 4, {v(vT0)}")
    e(f"v_bfe_u32 {v(vT0)}, {v(vLANE)}, 4, 1")
    e(f"v_lshl_add_u32 {v(vT0)}, {s(sW)}, 1, {v(vT0)}")
    e(f"v_lshlrev_b32 {v(vT0)}, 17, {v(vT0)}")
    e(f"v_and_b32 {v(vT1)}, 15, {v(vLANE)}")
    e(f"v_lshrrev_b32 {v(vT2)}, 5, {v(vLANE)}")
    e(f"v_lshl_add_u32 {v(vT1)}, {v(vT2)}, 4, {v(vT1)}")
    e(f"v_lshl_add_u32 {v(vOO)}, {v(vT1)}, 4, {v(vT0)}")
    for i in range(64):
        e(f"v_mul_f32 {v(vACC + i)}, {s(sC)}, {v(vACC + i)}")
    for i in range(32):
        e(f"v_cvt_pk_bf16_f32 {v(vQ + i)}, {v(vACC + 2 * i)}, {v(vACC + 2 * i + 1)}")
    for i in range(64):
        e(f"v_mov_b32 {v(vACC + i)}, 0")
    e(f"s_mov_b32 {s(sFLAG)}, 0")
    e(f"s_mov_b32 {s(sC)}, {f32bits(THR):#x}")
    e(f"v_mov_b32 {v(vLs)}, 0")
    e(f"s_mov_b32 {s(sCNT)}, 0")
    e(f"s_mov_b32 {s(sKS)}, {0}")
    e(f"s_mov_b32 {s(sVS)}, {2 * SLOT}")
    lg_all()

    def k_rd(f):
        kb, t = f >> 3, f & 7
        e(f"ds_read_b128 {v(vKF + 4 * (f % NKF), 4)}, {v(vKA + t)} offset:{8192 * kb}")
        lgq.append(f"K{f}")

    def qk_slot(f, S, first=False):
        kb, t = f >> 3, f & 7
        lg_wait(f"K{f}")
        c = ("0" if first else v(vNM, 16)) if t == 0 else v(S + 16 * kb, 16)
        e(f"v_mfma_f32_32x32x16_bf16 {v(S + 16 * kb, 16)}, {v(vKF + 4 * (f % NKF), 4)}, {v(vQ + 4 * t, 4)}, {c}")
        if f + NKF - 1 < 16:
            k_rd(f + NKF - 1)

    slow = []

    def sm1(S, lab):
        a = [f"v_max3_f32 {v(vU0)}, {v(S + 0)}, {v(S + 1)}, {v(S + 2)}",
             f"v_max3_f32 {v(vU1)}, {v(S + 3)}, {v(S + 4)}, {v(S + 5)}"]
        for k, i in enumerate(range(6, 16, 2)):
            u = vU0 if k % 2 == 0 else vU1
            a.append(f"v_max3_f32 {v(u)}, {v(u)}, {v(S + i)}, {v(S + i + 1)}")
        b = []
        for k, i in enumerate(range(16, 32, 2)):
            u = vU1 if k % 2 == 0 else vU0
            b.append(f"v_max3_f32 {v(u)}, {v(u)}, {v(S + i)}, {v(S + i + 1)}")
        b += [f"v_max_f32 {v(vU0)}, {v(vU0)}, {v(vU1)}",
              f"v_mov_b32 {v(vU1)}, {v(vU0)}",
              "s_nop 1",
              f"v_permlane32_swap_b32 {v(vU0)}, {v(vU1)}",
              f"v_max_f32 {v(vU0)}, {v(vU0)}, {v(vU1)}"]
        if lab is None:
            for i in range(32):
                b.append(f"v_sub_f32 {v(S + i)}, {v(S + i)}, {v(vU0)}")
            for i in range(16):
                b.append(f"v_sub_f32 {v(vNM + i)}, 0, {v(vU0)}")
            return a, b
        b += [f"v_cmp_lt_f32 vcc, {s(sC)}, {v(vU0)}",
              f"s_cbranch_vccnz L_slow_{lab}",
              f"L_back_{lab}:"]
        slow.append(f"L_slow_{lab}:")
        slow.append(f"v_max_f32 {v(vU0)}, 0, {v(vU0)}")
        slow.append(f"v_sub_f32 {v(vAL)}, 0, {v(vU0)}")
        slow.append(f"v_exp_f32 {v(vAL)}, {v(vAL)}")
        for i in range(32):
            slow.append(f"v_sub_f32 {v(S + i)}, {v(S + i)}, {v(vU0)}")
        for i in range(16):
            slow.append(f"v_sub_f32 {v(vNM + i)}, {v(vNM + i)}, {v(vU0)}")
        slow.append(f"s_mov_b32 {s(sFLAG)}, 1")
        slow.append(f"s_branch L_back_{lab}")
        return a, b

    def rs_check(lab):
        e(f"s_cmp_lg_u32 {s(sFLAG)}, 0")
        e(f"s_cbranch_scc1 L_rs_{lab}")
        e(f"L_rsback_{lab}:")
        slow.append(f"L_rs_{lab}:")
        slow.append(f"v_mul_f32 {v(vLs)}, {v(vLs)}, {v(vAL)}")
        for i in range(64):
            slow.append(f"v_mul_f32 {v(vACC + i)}, {v(vACC + i)}, {v(vAL)}")
        slow.append(f"s_mov_b32 {s(sFLAG)}, 0")
        slow.append(f"s_branch L_rsback_{lab}")

    NEXP2 = int(os.environ.get("NEXP2", "20"))

    def exps(S, lo, hi):
        return [f"v_exp_f32 {v(S + i)}, {v(S + i)}" for i in range(lo, hi)]

    def sm2_rest(S):
        r = exps(S, NEXP2, 32)
        r += [f"v_add_f32 {v(vU0)}, {v(S + 0)}, {v(S + 1)}",
              f"v_add_f32 {v(vU1)}, {v(S + 2)}, {v(S + 3)}",
              f"v_add_f32 {v(vU2)}, {v(S + 4)}, {v(S + 5)}",
              f"v_add_f32 {v(vU3)}, {v(S + 6)}, {v(S + 7)}"]
        for i in range(8, 32, 4):
            r += [f"v_add_f32 {v(vU0)}, {v(vU0)}, {v(S + i)}",
                  f"v_add_f32 {v(vU1)}, {v(vU1)}, {v(S + i + 1)}",
                  f"v_add_f32 {v(vU2)}, {v(vU2)}, {v(S + i + 2)}",
                  f"v_add_f32 {v(vU3)}, {v(vU3)}, {v(S + i + 3)}"]
        for i in range(16):
            r.append(f"v_cvt_pk_bf16_f32 {v(vP + i)}, {v(S + 2 * i)}, {v(S + 2 * i + 1)}")
        r += [f"v_add_f32 {v(vU0)}, {v(vU0)}, {v(vU1)}",
              f"v_add_f32 {v(vU2)}, {v(vU2)}, {v(vU3)}",
              f"v_add_f32 {v(vLs)}, {v(vLs)}, {v(vU0)}",
              f"v_add_f32 {v(vLs)}, {v(vLs)}, {v(vU2)}"]
        return r

    def cost(i):
        if i.startswith("v_exp"):
            return 2
        if i.endswith(":"):
            return 0
        return 1

    def spread(lst, nslots, lead=0):
        tot = sum(cost(i) for i in lst) - lead
        out = [[] for _ in range(nslots + 1)]
        acc = 0
        k = 0
        for i in lst:
            if k == 0 and acc + cost(i) > lead:
                k = 1
                acc = 0
            if k >= 1:
                while k < nslots and acc + cost(i) / 2 > tot * k / nslots:
                    k += 1
            out[k].append(i)
            acc += cost(i)
        return out

    def adv_slot(sreg, sdel):
        e(f"s_add_u32 {s(sdel)}, {s(sreg)}, {2 * SLOT}")
        e(f"s_cmp_ge_u32 {s(sdel)}, {SLOT * NSLOT}")
        e(f"s_cselect_b32 {s(sTO)}, {SLOT * NSLOT}, 0")
        e(f"s_sub_u32 {s(sdel)}, {s(sdel)}, {s(sTO)}")
        e(f"s_sub_u32 {s(sTO)}, {s(sdel)}, {s(sreg)}")
        e(f"s_mov_b32 {s(sreg)}, {s(sdel)}")
        e(f"s_mov_b32 {s(sdel)}, {s(sTO)}")

    for f in range(NKF - 1):
        k_rd(f)
    for f in range(16):
        qk_slot(f, vS[0], True)
    for t in range(8):
        e(f"v_add_u32 {v(vKA + t)}, {SLOT}, {v(vKA + t)}")
    e(f"s_mov_b32 {s(sKS)}, {SLOT}")
    a, b = sm1(vS[0], None)
    e("s_nop 3")
    for i in a + b + exps(vS[0], 0, NEXP2):
        e(i)
    stamp()
    assert not lgq
    vm_state = list(vmq)
    if STAMP:
        e("s_mov_b32 s94, 0")
        e("v_mov_b32 v15, 0")

    e("L_attn_loop:")
    for par in range(2):
        Sc, Sn = vS[par], vS[1 - par]
        if STAMP:
            e("s_memtime s[92:93]")
            e("s_waitcnt lgkmcnt(0)")
            e(f"v_cmp_eq_u32 vcc, s94, {v(vLANE)}")
            e("v_mov_b32 v18, s92")
            e("s_nop 1")
            e("v_cndmask_b32 v15, v15, v18, vcc")
            e("s_add_u32 s94, s94, 1")
        e("s_waitcnt vmcnt(4)")
        e("s_barrier")
        if STAMP:
            e("s_memtime s[92:93]")
            e("s_waitcnt lgkmcnt(0)")
            e(f"v_cmp_eq_u32 vcc, s94, {v(vLANE)}")
            e("v_mov_b32 v18, s92")
            e("s_nop 1")
            e("v_cndmask_b32 v15, v15, v18, vcc")
            e("s_add_u32 s94, s94, 1")
        for f in range(NKF - 1):
            k_rd(f)
        dparts = dma_parts("V", "x") + dma_parts("K", "x")
        ch = spread(sm2_rest(Sc), 16, lead=12)
        for i in ch[0]:
            e(i)
        adv_slot(sKS, sD0)
        adv_slot(sVS, sD1)
        for f in range(16):
            qk_slot(f, Sn)
            if f == 2:
                rs_check(par)
            if f % 2 == 0:
                for i in dparts[f // 2]:
                    e(i)
            if f >= 16 - (NFR - 1):
                tr_rd(f - (16 - (NFR - 1)))
            if f == 12:
                for t in range(8):
                    e(f"v_add_u32 {v(vKA + t)}, {s(sD0)}, {v(vKA + t)}")
            for i in ch[f + 1]:
                e(i)
        a, b = sm1(Sn, par)
        ch = spread(b + exps(Sn, 0, NEXP2), 14)
        for f in range(16):
            u, D = f >> 2, f & 3
            lg_wait(f"F{f}")
            r = vFR + 4 * (f % NFR)
            e(f"v_mfma_f32_32x32x16_bf16 {v(vACC + 16 * D, 16)}, {v(r, 4)}, {v(vP + 4 * u, 4)}, {v(vACC + 16 * D, 16)}")
            if f + NFR - 1 < 16:
                tr_rd(f + NFR - 1)
            if f == 0:
                for i in a:
                    e(i)
            if f == 16 - NFR:
                for D2 in range(4):
                    e(f"v_add_u32 {v(vTRA + D2)}, {s(sD1)}, {v(vTRA + D2)}")
            if f >= 2:
                for i in ch[f - 1]:
                    e(i)
        assert not lgq
    e(f"s_add_u32 {s(sCNT)}, {s(sCNT)}, 1")
    e(f"s_cmp_lt_u32 {s(sCNT)}, 8")
    e("s_cbranch_scc1 L_attn_loop")

    stamp()
    if int(os.environ.get("WOPF", "1")):
        e(f"s_mul_i32 s3, {s(sBLK)}, 40")
        e("s_add_u32 s4, s0, s3")
        e("s_addc_u32 s5, s1, 0")
        e("s_load_dwordx2 s[4:5], s[4:5], 32")
        e("s_and_b32 s3, s2, 3")
        e("s_lshl_b32 s3, s3, 6")
        e("s_lshr_b32 s6, s2, 3")
        e("s_add_u32 s3, s3, s6")
        e("s_mul_i32 s3, s3, 18432")
        e(f"v_lshlrev_b32 {v(vU2)}, 4, v0")
        e("s_waitcnt lgkmcnt(0)")
        e("s_add_u32 s4, s4, s3")
        e("s_addc_u32 s5, s5, 0")
        e("s_mov_b32 s6, 18432")
        e("s_mov_b32 s7, 0x20000")
        for i in range(5):
            e(f"s_movk_i32 s3, {4096 * i}")
            e(f"buffer_load_dwordx4 {v(vKF + 4 * (i % 4), 4) if i < 4 else v(vFR, 4)}, {v(vU2)}, s[4:7], s3 offen")
    e(f"s_add_u32 s3, s2, {s(sW)}")
    e("s_cmp_eq_u32 s3, 0")
    e("s_cbranch_scc0 L_attn_nononce")
    e("s_memrealtime s[6:7]")
    e(f"s_add_u32 s4, {s(sWS)}, {56 << 20}")
    e(f"s_addc_u32 s5, {s(sWS + 1)}, 0")
    e("s_waitcnt lgkmcnt(0)")
    e(f"v_mov_b32 {v(vU0)}, s6")
    e(f"v_mov_b32 {v(vU1)}, 0")
    e("s_mov_b32 s6, 4")
    e("s_mov_b32 s7, 0x20000")
    e(f"buffer_store_dword {v(vU0)}, {v(vU1)}, s[4:7], 0 offen")
    e("L_attn_nononce:")
    e(f"v_mov_b32 {v(vU1)}, {v(vLs)}")
    e("s_nop 1")
    e(f"v_permlane32_swap_b32 {v(vLs)}, {v(vU1)}")
    e(f"v_add_f32 {v(vLs)}, {v(vLs)}, {v(vU1)}")
    e(f"v_rcp_f32 {v(vLs)}, {v(vLs)}")
    e("s_nop 7")
    e("s_nop 3")
    for i in range(64):
        e(f"v_mul_f32 {v(vACC + i)}, {v(vACC + i)}, {v(vLs)}")
    for D in range(4):
        for p in range(2):
            r = vS[0] + 8 * D + 4 * p
            a = vACC + 16 * D + 4 * p
            e(f"v_cvt_pk_bf16_f32 {v(r)}, {v(a)}, {v(a + 1)}")
            e(f"v_cvt_pk_bf16_f32 {v(r + 1)}, {v(a + 2)}, {v(a + 3)}")
            e(f"v_cvt_pk_bf16_f32 {v(r + 2)}, {v(a + 8)}, {v(a + 9)}")
            e(f"v_cvt_pk_bf16_f32 {v(r + 3)}, {v(a + 10)}, {v(a + 11)}")
            e(f"buffer_store_dwordx4 {v(r, 4)}, {v(vOO)}, {s(SO, 4)}, 0 offen offset:{1024 * D + 512 * p}{os.environ.get('OST', ' sc1')}")
    e("s_waitcnt vmcnt(0)")
    if DIAG:
        e(f"s_cmp_eq_u32 {s(sW)}, 0")
        e("s_cbranch_scc0 L_attn_end")
        e("s_memrealtime s[92:93]")
        e("s_lshl_b32 s3, s2, 3")
        e(f"s_add_u32 s3, s3, {57 << 20}")
        e(f"s_add_u32 s4, {s(sWS)}, s3")
        e(f"s_addc_u32 s5, {s(sWS + 1)}, 0")
        e("s_mov_b32 s6, 8")
        e("s_mov_b32 s7, 0x20000")
        e("s_waitcnt lgkmcnt(0)")
        e("v_mov_b32 v2, s90")
        e("v_mov_b32 v3, s92")
        e("v_mov_b32 v1, 0")
        e("buffer_store_dwordx2 v[2:3], v1, s[4:7], 0 offen")
        e("s_waitcnt vmcnt(0)")
    if STAMP:
        stamp()
        stamp(True)
        e(f"s_lshl_b32 s3, s2, 10")
        e(f"s_lshl_b32 s4, {s(sW)}, 8")
        e(f"s_add_u32 s3, s3, s4")
        e(f"s_add_u32 s3, s3, {64 << 20}")
        e(f"s_add_u32 {s(SO)}, {s(sWS)}, s3")
        e(f"s_addc_u32 {s(SO + 1)}, {s(sWS + 1)}, 0")
        e(f"s_mov_b32 {s(SO + 2)}, 256")
        e("v_mov_b32 v1, 0")
        for i in range(nst[0]):
            e(f"v_mov_b32 v2, {s(56 + 2 * i)}")
            e(f"v_mov_b32 v3, {s(57 + 2 * i)}")
            e(f"buffer_store_dwordx2 v[2:3], v1, {s(SO, 4)}, 0 offen offset:{8 * i}")
            e("s_waitcnt vmcnt(0)")
        print("attn nstamps", nst[0])
        e(f"s_add_u32 {s(SO)}, {s(SO)}, {1 << 20}")
        e(f"s_addc_u32 {s(SO + 1)}, {s(SO + 1)}, 0")
        e(f"v_lshlrev_b32 v1, 2, {v(vLANE)}")
        e(f"buffer_store_dword v15, v1, {s(SO, 4)}, 0 offen")
        e("s_waitcnt vmcnt(0)")
    e("L_attn_end:")
    e("s_endpgm")
    for i in slow:
        e(i)


def gen_oproj():
    SW, SOo, SP, SD, SOUT = 8, 12, 16, 20, 24
    sBLK, sSP, sB, sCT, sW = 28, 29, 30, 31, 32
    sWO, sWS, sOUT, sDBG = 34, 36, 38, 40
    sM0, sWOFF, sOOFF, sT = 42, 43, 44, 45
    sTILE = 46
    sNON = 47
    sROT, sOOFF2, sM2 = 48, 49, 50
    KSL = 10240
    STG = 4 * KSL
    NS = 4
    vLANE, vT0, vT1, vT2, vT3 = 1, 2, 3, 4, 5
    vOW = 6
    vOO = 15
    vTRB = 17
    vTRA = 18
    vPO = 19
    vACC = 24
    vFR = 96
    NFR = 8
    vOB = 128

    STAMP = int(os.environ.get("STAMP2", "0"))
    nst = [0]

    def stamp(real=False):
        if not STAMP:
            return
        r = 56 + 2 * nst[0]
        nst[0] += 1
        assert r + 1 < 100
        e(f"{'s_memrealtime' if real else 's_memtime'} {s(r, 2)}")
        e("s_waitcnt lgkmcnt(0)")

    e("oproj_kernel:")
    e("s_cmp_ge_u32 s2, 256")
    e("s_cbranch_scc1 L_op_end")
    DIAG = int(os.environ.get("DIAG", "0"))
    if DIAG:
        e("s_memrealtime s[90:91]")
        e("s_waitcnt lgkmcnt(0)")
    stamp(True)
    stamp()
    e(f"s_and_b32 {s(sSP)}, s2, 3")
    e(f"s_bfe_u32 {s(sBLK)}, s2, 0x10002")
    e(f"s_bfe_u32 {s(sCT)}, s2, 0x20003")
    e(f"s_lshr_b32 {s(sB)}, s2, 5")
    e(f"s_mul_i32 s3, {s(sBLK)}, 40")
    e("s_add_u32 s4, s0, s3")
    e("s_addc_u32 s5, s1, 0")
    e(f"s_load_dwordx2 {s(sWO, 2)}, s[4:5], 32")
    e(f"s_load_dwordx2 {s(sOUT, 2)}, s[0:1], 80")
    e(f"s_load_dwordx2 {s(sDBG, 2)}, s[0:1], 88")
    e(f"s_load_dwordx2 {s(sWS, 2)}, s[0:1], 96")
    e(f"v_and_b32 {v(vLANE)}, 63, v0")
    e(f"v_lshrrev_b32 {v(vT0)}, 6, v0")
    e("s_nop 0")
    e(f"v_readfirstlane_b32 {s(sW)}, {v(vT0)}")
    e(f"v_lshl_add_u32 {v(vT0)}, {v(vT0)}, 6, {v(vLANE)}")
    for n in range(3):
        e(f"v_add_u32 {v(vT1)}, {256 * n}, {v(vT0)}")
        e(f"v_mul_u32_u24 {v(vT2)}, 3641, {v(vT1)}")
        e(f"v_lshrrev_b32 {v(vT2)}, 16, {v(vT2)}")
        e(f"v_mul_u32_u24 {v(vT3)}, 18, {v(vT2)}")
        e(f"v_sub_u32 {v(vT3)}, {v(vT1)}, {v(vT3)}")
        e(f"v_mul_u32_u24 {v(vT2)}, 1152, {v(vT2)}")
        e(f"v_lshl_add_u32 {v(vOW + n)}, {v(vT3)}, 4, {v(vT2)}")
    e(f"v_cmp_gt_u32 vcc, 576, {v(vT1)}")
    e(f"v_mov_b32 {v(vT2)}, 0x7ffffff0")
    e("s_nop 1")
    e(f"v_cndmask_b32 {v(vOW + 2)}, {v(vT2)}, {v(vOW + 2)}, vcc")
    e(f"v_lshrrev_b32 {v(vT0)}, 2, {v(vLANE)}")
    e(f"v_mul_u32_u24 {v(vT0)}, 288, {v(vT0)}")
    e(f"v_and_b32 {v(vT1)}, 3, {v(vLANE)}")
    e(f"v_lshl_add_u32 {v(vTRB)}, {v(vT1)}, 3, {v(vT0)}")
    e(f"s_lshl_b32 s3, {s(sW)}, 18")
    e(f"s_lshl_b32 s4, {s(sSP)}, 15")
    e("s_add_u32 s3, s3, s4")
    e(f"v_lshlrev_b32 {v(vT0)}, 4, {v(vLANE)}")
    e(f"v_add_u32 {v(vOO)}, s3, {v(vT0)}")
    e(f"v_add_u32 {v(vOO + 1)}, 0x20000, {v(vOO)}")
    e("s_waitcnt lgkmcnt(0)")
    e(f"s_mul_i32 s3, {s(sSP)}, {1024 * 1152}")
    e(f"s_mul_i32 s4, {s(sCT)}, 288")
    e("s_add_u32 s3, s3, s4")
    e(f"s_add_u32 {s(SW)}, {s(sWO)}, s3")
    e(f"s_addc_u32 {s(SW + 1)}, {s(sWO + 1)}, 0")
    e(f"s_sub_u32 {s(SW + 2)}, {4096 * 1152}, s3")
    e(f"s_mov_b32 {s(SW + 3)}, 0x20000")
    e(f"s_lshl_b32 s3, {s(sBLK)}, 3")
    e(f"s_add_u32 s3, s3, {s(sB)}")
    e(f"s_lshl_b32 {s(sTILE)}, s3, 2")
    e(f"s_add_u32 {s(sTILE)}, {s(sTILE)}, {s(sCT)}")
    e("s_lshl_b32 s3, s3, 20")
    e(f"s_add_u32 {s(SOo)}, {s(sWS)}, s3")
    e(f"s_addc_u32 {s(SOo + 1)}, {s(sWS + 1)}, 0")
    e(f"s_mov_b32 {s(SOo + 2)}, {1 << 20}")
    e(f"s_mov_b32 {s(SOo + 3)}, 0x20000")
    e(f"s_mul_i32 s3, {s(sTILE)}, {16 * 18432}")
    e(f"s_add_u32 s3, s3, {16 << 20}")
    e(f"s_add_u32 {s(SP)}, {s(sWS)}, s3")
    e(f"s_addc_u32 {s(SP + 1)}, {s(sWS + 1)}, 0")
    e(f"s_mov_b32 {s(SP + 2)}, {16 * 18432}")
    e(f"s_mov_b32 {s(SP + 3)}, 0x20000")
    e(f"s_mov_b32 {s(SD)}, {s(sDBG)}")
    e(f"s_mov_b32 {s(SD + 1)}, {s(sDBG + 1)}")
    e(f"s_mov_b32 {s(SD + 2)}, 256")
    e(f"s_mov_b32 {s(SD + 3)}, 0x20000")
    e(f"s_lshl_b32 s3, {s(sB)}, 7")
    e(f"s_lshl_b32 s4, {s(sW)}, 5")
    e("s_add_u32 s3, s3, s4")
    e("s_mul_i32 s3, s3, 2304")
    e(f"s_mul_i32 s4, {s(sBLK)}, 1152")
    e("s_add_u32 s3, s3, s4")
    e(f"s_mul_i32 s4, {s(sCT)}, 288")
    e("s_add_u32 s3, s3, s4")
    e(f"s_add_u32 {s(SOUT)}, {s(sOUT)}, s3")
    e(f"s_addc_u32 {s(SOUT + 1)}, {s(sOUT + 1)}, 0")
    e(f"s_sub_u32 {s(SOUT + 2)}, {1024 * 2304}, s3")
    e(f"s_mov_b32 {s(SOUT + 3)}, 0x20000")
    e(f"s_lshl_b32 {s(sM0)}, {s(sW)}, 10")
    e(f"s_cmp_eq_u32 {s(sW)}, 0")
    e(f"s_movk_i32 {s(sM2)}, 9216")
    e(f"s_cselect_b32 {s(sM2)}, 8192, {s(sM2)}")
    if int(os.environ.get("K2ROT", "0")):
        e(f"s_lshl_b32 {s(sROT)}, {s(sCT)}, 1")
        e(f"s_add_u32 {s(sROT)}, {s(sROT)}, {s(sB)}")
    else:
        e(f"s_mov_b32 {s(sROT)}, 0")
    e(f"s_add_u32 s4, {s(sWS)}, {56 << 20}")
    e(f"s_addc_u32 s5, {s(sWS + 1)}, 0")
    e(f"s_load_dword {s(sNON)}, s[4:5], 0")
    e("s_waitcnt lgkmcnt(0)")

    vmq = []

    def vm_wait(tag):
        idx = max([i for i, t_ in enumerate(vmq) if t_ == tag], default=-1)
        if idx < 0:
            return
        e(f"s_waitcnt vmcnt({len(vmq) - 1 - idx})")
        del vmq[:idx + 1]

    def issue_parts(st):
        slot = (st % NS) * STG
        g = []
        for ks in range(4):
            for n in range(3):
                x = []
                if ks == 0 and n == 0:
                    x.append(f"s_add_u32 {s(sOOFF2)}, {s(sROT)}, {st}")
                    x.append(f"s_and_b32 {s(sOOFF2)}, {s(sOOFF2)}, 7")
                    x.append(f"s_mul_i32 {s(sWOFF)}, {s(sOOFF2)}, {128 * 1152}")
                    x.append(f"s_lshl_b32 {s(sOOFF)}, {s(sOOFF2)}, 12")
                elif n == 0:
                    x.append(f"s_add_u32 {s(sWOFF)}, {s(sWOFF)}, {32 * 1152}")
                if n < 2:
                    x.append(f"s_add_u32 m0, {s(sM0)}, {slot + ks * KSL + 4096 * n}")
                else:
                    x.append(f"s_add_u32 m0, {s(sM2)}, {slot + ks * KSL}")
                x.append("s_nop 0")
                x.append(f"buffer_load_dwordx4 {v(vOW + n)}, {s(SW, 4)}, {s(sWOFF)} offen lds")
                g.append((x, f"S{st}k{ks}"))
            for rh in range(2):
                r = vOB + 32 * (st % 4) + 8 * ks + 4 * rh
                g.append(([f"buffer_load_dwordx4 {v(r, 4)}, {v(vOO + rh)}, {s(SOo, 4)}, {s(sOOFF)} offen offset:{1024 * ks}"], f"S{st}k{ks}"))
        return g

    def emit_part(g):
        for i in g[0]:
            e(i)
        vmq.append(g[1])

    PRE = int(os.environ.get("K2PRE", "3"))
    FINE = int(os.environ.get("K2FINE", "2"))
    pend = []
    for st in range(PRE):
        for g in issue_parts(st):
            emit_part(g)
    for st in range(PRE, 3):
        pend += issue_parts(st)
    for st in range(8):
        if st + 3 < 8:
            later = issue_parts(st + 3)
        else:
            later = []
        for ks0 in range(4):
            if ks0 == 0 or st < FINE:
                vm_wait(f"S{st}k{ks0 if st < FINE else 3}")
                e("s_barrier")
                if ks0 == 0:
                    stamp()
                    pend += later
                    e(f"v_add_u32 {v(vTRA)}, {(st % NS) * STG}, {v(vTRB)}")
                lo = 9 * ks0
                hi = 9 * ks0 + 9 if st < FINE else 36

                def rd(f):
                    ks, nb = f // 9, f % 9
                    r = vFR + 4 * (f % NFR)
                    e(f"ds_read_b64_tr_b16 {v(r, 2)}, {v(vTRA)} offset:{ks * KSL + 32 * nb}")
                    e(f"ds_read_b64_tr_b16 {v(r + 2, 2)}, {v(vTRA)} offset:{ks * KSL + 16 * 288 + 32 * nb}")

                for f in range(lo, min(lo + NFR - 1, hi)):
                    rd(f)
                for f in range(lo, hi):
                    ks, nb = f // 9, f % 9
                    inflight = min(NFR - 1, hi - f)
                    e(f"s_waitcnt lgkmcnt({2 * (inflight - 1)})")
                    r = vFR + 4 * (f % NFR)
                    for rh in range(2):
                        a = vACC + 8 * nb + 4 * rh
                        c = "0" if (st == 0 and ks == 0) else v(a, 4)
                        ob = vOB + 32 * (st % 4) + 8 * ks + 4 * rh
                        e(f"v_mfma_f32_16x16x32_bf16 {v(a, 4)}, {v(r, 4)}, {v(ob, 4)}, {c}")
                    if f + NFR - 1 < hi:
                        rd(f + NFR - 1)
                    npop = 2 if len(pend) > 20 else 1
                    for _ in range(npop):
                        if pend:
                            emit_part(pend.pop(0))
        assert not pend or st < 2, (st, len(pend))
    stamp()
    vNB = 6
    vCK = 10
    e(f"s_mul_i32 s3, {s(sW)}, 18432")
    e(f"v_lshlrev_b32 {v(vT0)}, 4, {v(vLANE)}")
    e(f"v_add_u32 {v(vPO)}, s3, {v(vT0)}")
    for k in range(4):
        e(f"s_bfe_u32 s3, {s(sNON)}, {(8 << 16) | (8 * k):#x}")
        e(f"v_mov_b32 {v(vNB + k)}, s3")
    e("s_movk_i32 s5, 0xff")
    e(f"v_and_b32 {v(vT1)}, 15, {v(vLANE)}")
    e(f"v_mul_u32_u24 {v(vT1)}, 2304, {v(vT1)}")
    e(f"v_lshrrev_b32 {v(vT2)}, 4, {v(vLANE)}")
    e(f"v_lshl_add_u32 {v(vT1)}, {v(vT2)}, 3, {v(vT1)}")
    e(f"v_add_u32 {v(vT2)}, {16 * 2304}, {v(vT1)}")
    e(f"s_mov_b32 {s(sT)}, 0")
    for d in range(1, 4):
        e(f"s_cmp_eq_u32 {s(sSP)}, {d}")
        e(f"s_cbranch_scc1 L_op_red{d}")
    n0 = nst[0]
    for d in range(4):
        nst[0] = n0
        e(f"L_op_red{d}:")
        own = [f for f in range(18) if f % 4 == d]
        for f in range(18):
            if f % 4 == d:
                continue
            for k in range(4):
                e(f"v_bfi_b32 {v(vACC + 4 * f + k)}, s5, {v(vNB + k)}, {v(vACC + 4 * f + k)}")
            e(f"s_mov_b32 s3, {(d * 4 * 18 + f) * 1024}")
            e(f"buffer_store_dwordx4 {v(vACC + 4 * f, 4)}, {v(vPO)}, {s(SP, 4)}, s3 offen sc1")
        stamp()
        regs = []
        for k in range(1, 4):
            src = (d + k) & 3
            for i, f in enumerate(own):
                regs.append((96 + 4 * len(regs), f, src))

        def fetch(lst, lab, nxt):
            e(f"{lab}:")
            for r, f, src in lst:
                e(f"s_mov_b32 s3, {(src * 4 * 18 + f) * 1024}")
                e(f"buffer_load_dwordx4 {v(r, 4)}, {v(vPO)}, {s(SP, 4)}, s3 offen sc1")
            e(f"v_mov_b32 {v(vCK)}, 0")
            e(f"s_add_u32 {s(sT)}, {s(sT)}, 1")
            e("s_waitcnt vmcnt(0)")
            for r, f, src in lst:
                for k in range(4):
                    e(f"v_xor_b32 {v(vT3)}, {v(r + k)}, {v(vNB + k)}")
                    e(f"v_and_or_b32 {v(vCK)}, {v(vT3)}, s5, {v(vCK)}")
            e(f"v_cmp_ne_u32 vcc, 0, {v(vCK)}")
            e(f"s_cbranch_vccz {nxt}")
            e(f"s_cmp_lt_u32 {s(sT)}, 0x20000")
            e(f"s_cbranch_scc1 {lab}")

        if int(os.environ.get("K2POLL", "0")):
            fetch([x for x in regs if x[1] == own[-1]], f"L_op_poll{d}", f"L_op_retry{d}")
            fetch([x for x in regs if x[1] != own[-1]], f"L_op_retry{d}", f"L_op_ok{d}")
        else:
            fetch(regs, f"L_op_retry{d}", f"L_op_ok{d}")
        regs = [(r, f) for r, f, src in regs]
        e(f"L_op_ok{d}:")
        stamp()
        for r, f in regs:
            for k in range(4):
                e(f"v_add_f32 {v(vACC + 4 * f + k)}, {v(vACC + 4 * f + k)}, {v(r + k)}")
        for f in own:
            nb, rh = f >> 1, f & 1
            a = vACC + 4 * f
            e(f"v_cvt_pk_bf16_f32 {v(a)}, {v(a)}, {v(a + 1)}")
            e(f"v_cvt_pk_bf16_f32 {v(a + 1)}, {v(a + 2)}, {v(a + 3)}")
            e(f"buffer_store_dwordx2 {v(a, 2)}, {v(vT1 if rh == 0 else vT2)}, {s(SOUT, 4)}, 0 offen offset:{32 * nb}")
        if d < 3:
            e("s_branch L_op_fin")
    e("L_op_fin:")
    if DIAG:
        e("s_waitcnt vmcnt(0)")
        e(f"s_add_u32 s3, s2, {s(sW)}")
        e("s_cmp_eq_u32 s3, 0")
        e("s_cbranch_scc0 L_op_end")
        e("s_memrealtime s[92:93]")
        e(f"s_add_u32 s4, {s(sWS)}, {57 << 20}")
        e(f"s_addc_u32 s5, {s(sWS + 1)}, 0")
        e("s_mov_b32 s6, 4096")
        e("s_mov_b32 s7, 0x20000")
        e(f"v_lshlrev_b32 v1, 3, {v(vLANE)}")
        for i in range(8):
            e(f"buffer_load_dwordx2 v[{100 + 2 * i}:{101 + 2 * i}], v1, s[4:7], 0 offen offset:{512 * i}")
        e("s_waitcnt vmcnt(0) lgkmcnt(0)")
        e("v_readfirstlane_b32 s94, v100")
        for i in range(16):
            e(f"v_subrev_u32 v{100 + i}, s94, v{100 + i}")
        e("v_max_i32 v120, v101, v103")
        e("v_max3_i32 v120, v120, v105, v107")
        e("v_max_i32 v121, v109, v111")
        e("v_max3_i32 v121, v121, v113, v115")
        e("v_max3_i32 v122, v100, v102, v104")
        e("v_max3_i32 v122, v122, v106, v108")
        e("v_max3_i32 v122, v122, v110, v112")
        e("v_max_i32 v122, v122, v114")
        e("v_min3_i32 v123, v101, v103, v105")
        e("v_min_i32 v123, v123, v107")
        e("v_mov_b32 v124, 0")
        for k, r in enumerate((120, 121, 122)):
            e(f"v_mov_b32 v125, {4 * k}")
            e(f"buffer_atomic_smax v{r}, v125, {s(SD, 4)}, 0 offen")
        e("s_sub_u32 s90, s90, s94")
        e("s_sub_u32 s92, s92, s94")
        e("v_mov_b32 v126, s90")
        e("v_mov_b32 v127, s92")
        e("v_mov_b32 v125, 16")
        e(f"buffer_store_dwordx2 v[126:127], v125, {s(SD, 4)}, 0 offen")
        e("s_waitcnt vmcnt(0)")
    if STAMP:
        e("s_waitcnt vmcnt(0)")
        stamp()
        stamp(True)
        e(f"s_cmp_eq_u32 {s(sW)}, 0")
        e("s_cbranch_scc0 L_op_end")
        e(f"s_lshl_b32 s3, s2, 10")
        e(f"s_add_u32 s3, s3, {64 << 20}")
        e(f"s_add_u32 {s(SOo)}, {s(sWS)}, s3")
        e(f"s_addc_u32 {s(SOo + 1)}, {s(sWS + 1)}, 0")
        e(f"s_mov_b32 {s(SOo + 2)}, 256")
        e("v_mov_b32 v1, 0")
        for i in range(nst[0]):
            e(f"v_mov_b32 v2, {s(56 + 2 * i)}")
            e(f"v_mov_b32 v3, {s(57 + 2 * i)}")
            e(f"buffer_store_dwordx2 v[2:3], v1, {s(SOo, 4)}, 0 offen offset:{8 * i}")
            e("s_waitcnt vmcnt(0)")
        print("nstamps", nst[0])
    e("L_op_end:")
    e("s_endpgm")


def main():
    hdr = open(f"cdna_kernels/{NAME}.s.ref").read().split("\n")
    head = [x for x in hdr if x.startswith(";") and "@launch" not in x and "Override" not in x and "grid=ceil" not in x]
    out = head[:]
    if ONLY != "oproj":
        out.append("; @launch kernel=attn_kernel grid=(512,1,1) block=(256,1,1) lds=%d" % (SLOT * NSLOT))
    if ONLY != "attn":
        out.append("; @launch kernel=oproj_kernel grid=(256,1,1) block=(256,1,1) lds=163840")
    out.append('.amdgcn_target "amdgcn-amd-amdhsa--gfx950"')
    out.append(".text")
    out.append(".globl attn_kernel")
    out.append(".p2align 8")
    out.append(".type attn_kernel,@function")
    gen_attn()
    L.append(".globl oproj_kernel")
    L.append(".p2align 8")
    L.append(".type oproj_kernel,@function")
    gen_oproj()
    out += L
    out.append('.section .rodata,"a"')
    out.append(".p2align 6")
    out.append(""".amdhsa_kernel attn_kernel
  .amdhsa_next_free_vgpr 256
  .amdhsa_next_free_sgpr 102
  .amdhsa_accum_offset 256
  .amdhsa_group_segment_fixed_size 0
  .amdhsa_kernarg_size 104
  .amdhsa_user_sgpr_count 2
  .amdhsa_user_sgpr_kernarg_segment_ptr 1
  .amdhsa_system_sgpr_workgroup_id_x 1
.end_amdhsa_kernel
.p2align 6
.amdhsa_kernel oproj_kernel
  .amdhsa_next_free_vgpr 256
  .amdhsa_next_free_sgpr 102
  .amdhsa_accum_offset 256
  .amdhsa_group_segment_fixed_size 0
  .amdhsa_kernarg_size 104
  .amdhsa_user_sgpr_count 2
  .amdhsa_user_sgpr_kernarg_segment_ptr 1
  .amdhsa_system_sgpr_workgroup_id_x 1
.end_amdhsa_kernel""")
    open(OUT, "w").write("\n".join(out) + "\n")


if __name__ == "__main__":
    main()
```

```python
import sys, os
NOCOMP = int(os.environ.get("NOCOMP", "0"))

NAME = "concat_heads__mha_block_cached__mha_block_cached__near_ridge"
OUT = f"cdna_kernels/{NAME}.s"

L = []
INSM = [0]


K2X = os.environ.get("K2X", "")


def e(s=""):
    if K2X == "noW" and s.startswith("buffer_load_dwordx4") and s.endswith("lds"):
        s = "s_nop 0"
    if K2X == "noO" and s.startswith("buffer_load_dwordx4") and "s[12:15], s44" in s:
        s = "s_nop 0"
    if K2X and s.startswith("s_waitcnt vmcnt(") and not s.startswith("s_waitcnt vmcnt(0)"):
        n = int(s[16:s.index(")")])
        s = f"s_waitcnt vmcnt({n // 17 * (8 if K2X == 'noW' else 9)})"
    if NOCOMP & 1 and s.startswith("v_mfma"):
        return
    if NOCOMP & 2 and s.startswith("ds_read"):
        return
    if NOCOMP & 4 and INSM[0] and s.startswith("v_"):
        return
    L.append("    " + s if s and not s.endswith(":") else s)


def v(i, n=1):
    return f"v{i}" if n == 1 else f"v[{i}:{i + n - 1}]"


def s(i, n=1):
    return f"s{i}" if n == 1 else f"s[{i}:{i + n - 1}]"


SLOT = 16384
NSLOT = int(os.environ.get("NSLOT", "5"))
OUT = os.environ.get("OUT", OUT)
VMW = 4 * (NSLOT - 2)
NT = {"0": "", "1": " nt", "2": " sc1", "3": " sc1 nt", "4": " sc0 sc1 nt", "5": " sc0 nt"}[os.environ.get("NT", "1")]
ONLY = os.environ.get("ONLY", "")
import struct


def f32bits(x):
    return struct.unpack("<I", struct.pack("<f", x))[0]


def gen_attn():
    SK, SV, SW, SX, SO = 8, 12, 16, 20, 24
    sPTR = 28
    sWS = 36
    sH, sB, sBLK = 38, 39, 40
    sRD, sWR, sWAVE = 41, 42, 43
    sKOFF, sVOFF, sWOFF = 44, 45, 46
    sCNT = 47
    sC = 48
    sD0, sD1 = 49, 51
    sW = 50
    sTO = 52
    sXOFF = 53
    sKS, sVS = 54, 55
    vTRA = 1
    vOK = 5
    vOV = 9
    vT0, vT1, vT2, vT3 = 10, 11, 12, 13
    vLANE = 14
    vM, vLs, vAL, vMC = 15, 16, 17, 18
    vU0, vU1, vU2, vU3 = 19, 20, 21, 22
    vOO = 23
    vACC = 24
    vQ = 88
    vS = [120, 152]
    vP = 184
    vKF = 200
    NKF = 4
    vFR = 216
    NFR = 4
    vKA = 232
    vNM = 240
    vDW = 247
    sFLAG = 95
    THR = 8.0
    vR = 120
    vX = 184
    vOW = 200
    vOX = 204
    vXA = 208

    STAMP = int(os.environ.get("STAMP", "0"))
    PRIO = int(os.environ.get("PRIO", "0"))
    nst = [0]

    def stamp(real=False):
        if not STAMP:
            return
        r = 56 + 2 * nst[0]
        nst[0] += 1
        assert r + 1 < 100
        e(f"{'s_memrealtime' if real else 's_memtime'} {s(r, 2)}")
        e("s_waitcnt lgkmcnt(0)")

    vmq = []
    lgq = []

    def vm_wait(tag):
        idx = max([i for i, t in enumerate(vmq) if t == tag], default=-1)
        if idx < 0:
            return
        n = len(vmq) - 1 - idx
        e(f"s_waitcnt vmcnt({n})")
        del vmq[:idx + 1]

    def lg_wait(tag):
        idx = max([i for i, t in enumerate(lgq) if t == tag], default=-1)
        if idx < 0:
            return
        n = len(lgq) - 1 - idx
        assert n <= 15
        e(f"s_waitcnt lgkmcnt({n})")
        del lgq[:idx + 1]

    def lg_all():
        if lgq:
            e("s_waitcnt lgkmcnt(0)")
            del lgq[:]

    e("attn_kernel:")
    e("s_cmp_ge_u32 s2, 512")
    e("s_cbranch_scc1 L_attn_end")
    DIAG = int(os.environ.get("DIAG", "0"))
    if DIAG:
        e("s_memrealtime s[90:91]")
        e("s_waitcnt lgkmcnt(0)")
    stamp(True)
    stamp()
    MAP = int(os.environ.get("MAP", "1"))
    if MAP == 0:
        e(f"s_lshr_b32 {s(sBLK)}, s2, 8")
        e(f"s_and_b32 {s(sH)}, s2, 31")
        e(f"s_bfe_u32 {s(sB)}, s2, 0x30005")
    else:
        e(f"s_bfe_u32 {s(sBLK)}, s2, 0x10002")
        e(f"s_and_b32 s3, s2, 3")
        e(f"s_bfe_u32 s4, s2, 0x30003")
        e(f"s_lshl_b32 s3, s3, 3")
        e(f"s_or_b32 {s(sH)}, s3, s4")
        e(f"s_lshr_b32 {s(sB)}, s2, 6")
    e(f"s_mul_i32 s3, {s(sBLK)}, 40")
    e("s_add_u32 s4, s0, s3")
    e("s_addc_u32 s5, s1, 0")
    e(f"s_load_dwordx8 {s(sPTR, 8)}, s[4:5], 0")
    e(f"s_load_dwordx2 {s(sWS, 2)}, s[0:1], 96")
    e(f"s_load_dwordx2 s[96:97], s[0:1], 88")
    if PRIO:
        e(f"s_cmp_lt_u32 s2, 256")
        e("s_cbranch_scc0 L_attn_noprio")
        e(f"s_setprio {PRIO}")
        e("L_attn_noprio:")
    e(f"v_and_b32 {v(vLANE)}, 63, v0")
    e(f"v_lshrrev_b32 {v(vT0)}, 6, v0")
    e("s_nop 0")
    e(f"v_readfirstlane_b32 {s(sW)}, {v(vT0)}")
    e(f"s_lshl_b32 {s(sWAVE)}, {s(sW)}, 12")
    e(f"v_lshlrev_b32 {v(vDW)}, 12, {v(vT0)}")
    e(f"v_lshl_add_u32 {v(vDW)}, {v(vLANE)}, 4, {v(vDW)}")
    e(f"v_lshrrev_b32 {v(vT1)}, 4, {v(vLANE)}")
    e(f"v_and_b32 {v(vT2)}, 15, {v(vLANE)}")
    e(f"v_lshl_add_u32 {v(vT3)}, {v(vT0)}, 4, {v(vT1)}")
    e(f"v_lshlrev_b32 {v(vOV)}, 2, {v(vT1)}")
    e(f"v_xor_b32 {v(vOV)}, {v(vOV)}, {v(vT2)}")
    e(f"v_lshlrev_b32 {v(vOV)}, 4, {v(vOV)}")
    for n in range(4):
        e(f"v_add_u32 {v(vOW + n)}, {4 * n}, {v(vT3)}")
        e(f"v_lshl_add_u32 {v(vOW + n)}, {v(vOW + n)}, 13, {v(vOV)}")
        if n:
            e(f"v_subrev_u32 {v(vOW + n)}, {1024 * n}, {v(vOW + n)}")
    e(f"v_lshl_add_u32 {v(vOV)}, {v(vT3)}, 8, {v(vOV)}")
    for n in range(4):
        e(f"v_add_u32 {v(vOK + n)}, {4 * n}, {v(vT1)}")
        e(f"v_xor_b32 {v(vOK + n)}, {v(vOK + n)}, {v(vT2)}")
        e(f"v_lshlrev_b32 {v(vOK + n)}, 4, {v(vOK + n)}")
        e(f"v_lshl_add_u32 {v(vOK + n)}, {v(vT3)}, 8, {v(vOK + n)}")
    e(f"v_lshrrev_b32 {v(vT1)}, 3, {v(vLANE)}")
    e(f"v_lshl_add_u32 {v(vT1)}, {v(vT0)}, 5, {v(vT1)}")
    e(f"v_mul_u32_u24 {v(vT1)}, 1152, {v(vT1)}")
    e(f"v_lshrrev_b32 {v(vT2)}, 4, {v(vLANE)}")
    e(f"v_and_b32 {v(vT3)}, 7, {v(vLANE)}")
    for n in range(4):
        e(f"v_add_u32 {v(vOX + n)}, {4 * n}, {v(vT2)}")
        e(f"v_and_b32 {v(vOX + n)}, 7, {v(vOX + n)}")
        e(f"v_xor_b32 {v(vOX + n)}, {v(vOX + n)}, {v(vT3)}")
        e(f"v_lshl_add_u32 {v(vOX + n)}, {v(vOX + n)}, 4, {v(vT1)}")
        e(f"v_add_u32 {v(vOX + n)}, {8 * 1152 * n - 1024 * n}, {v(vOX + n)}")
    e(f"v_and_b32 {v(vT1)}, 31, {v(vLANE)}")
    e(f"v_bfe_u32 {v(vT2)}, {v(vLANE)}, 1, 3")
    e(f"v_lshrrev_b32 {v(vT3)}, 5, {v(vLANE)}")
    e(f"v_xor_b32 {v(vT2)}, {v(vT2)}, {v(vT3)}")
    e(f"v_lshl_add_u32 {v(vT1)}, {v(vT0)}, 5, {v(vT1)}")
    e(f"v_lshlrev_b32 {v(vT1)}, 7, {v(vT1)}")
    for u in range(4):
        e(f"v_xor_b32 {v(vT3)}, {2 * u}, {v(vT2)}")
        e(f"v_lshl_add_u32 {v(vXA + u)}, {v(vT3)}, 4, {v(vT1)}")

    def trbase(sigma, slot):
        e(f"v_lshrrev_b32 {v(vT0)}, 5, {v(vLANE)}")
        e(f"v_bfe_u32 {v(vT1)}, {v(vLANE)}, 2, 2")
        e(f"v_lshl_add_u32 {v(vT0)}, {v(vT0)}, 3, {v(vT1)}")
        e(f"v_lshlrev_b32 {v(vT0)}, 8, {v(vT0)}")
        e(f"v_bfe_u32 {v(vT2)}, {v(vLANE)}, 4, 1")
        e(f"v_lshl_add_u32 {v(vT0)}, {v(vT2)}, 5, {v(vT0)}")
        if sigma:
            e(f"v_and_b32 {v(vT2)}, 1, {v(vLANE)}")
            e(f"v_bfe_u32 {v(vT3)}, {v(vLANE)}, 1, 1")
        else:
            e(f"v_bfe_u32 {v(vT2)}, {v(vLANE)}, 1, 1")
            e(f"v_and_b32 {v(vT3)}, 1, {v(vLANE)}")
        e(f"v_lshl_add_u32 {v(vT0)}, {v(vT2)}, 4, {v(vT0)}")
        e(f"v_lshl_add_u32 {v(vT0)}, {v(vT3)}, 3, {v(vT0)}")
        e(f"v_add_u32 {v(vT0)}, {slot * SLOT}, {v(vT0)}")
        for D in range(4):
            e(f"v_xor_b32 {v(vT2)}, {D}, {v(vT1)}")
            e(f"v_lshl_add_u32 {v(vTRA + D)}, {v(vT2)}, 6, {v(vT0)}")

    for u in range(4):
        e(f"v_add_u32 {v(vXA + u)}, {3 * SLOT}, {v(vXA + u)}")
    trbase(True, 0)

    e("s_waitcnt lgkmcnt(0)")
    e(f"s_lshl_b32 s3, {s(sB)}, 5")
    e(f"s_add_u32 s3, s3, {s(sH)}")
    e("s_lshl_b32 s3, s3, 18")
    for (S, p) in ((SK, sPTR + 2), (SV, sPTR + 4)):
        e(f"s_add_u32 {s(S)}, {s(p)}, s3")
        e(f"s_addc_u32 {s(S + 1)}, {s(p + 1)}, 0")
        e(f"s_mov_b32 {s(S + 2)}, 262144")
        e(f"s_mov_b32 {s(S + 3)}, 0x20000")
    e(f"s_mul_i32 s3, {s(sB)}, 147456")
    e(f"s_add_u32 {s(SX)}, {s(sPTR)}, s3")
    e(f"s_addc_u32 {s(SX + 1)}, {s(sPTR + 1)}, 0")
    e(f"s_mov_b32 {s(SX + 2)}, 147456")
    e(f"s_mov_b32 {s(SX + 3)}, 0x20000")
    e(f"s_lshl_b32 s3, {s(sH)}, 8")
    e(f"s_add_u32 {s(SW)}, {s(sPTR + 6)}, s3")
    e(f"s_addc_u32 {s(SW + 1)}, {s(sPTR + 7)}, 0")
    e(f"s_sub_u32 {s(SW + 2)}, {576 * 8192}, s3")
    e(f"s_mov_b32 {s(SW + 3)}, 0x20000")
    e(f"s_lshl_b32 s3, {s(sBLK)}, 3")
    e(f"s_add_u32 s3, s3, {s(sB)}")
    e("s_lshl_b32 s3, s3, 20")
    e(f"s_lshl_b32 s4, {s(sH)}, 12")
    e("s_add_u32 s3, s3, s4")
    e(f"s_add_u32 {s(SO)}, {s(sWS)}, s3")
    e(f"s_addc_u32 {s(SO + 1)}, {s(sWS + 1)}, 0")
    e(f"s_sub_u32 {s(SO + 2)}, {1 << 20}, s4")
    e(f"s_mov_b32 {s(SO + 3)}, 0x20000")
    e(f"s_mov_b32 {s(sC)}, {f32bits(128 ** -0.5 * 1.4426950408889634):#x}")
    e("s_mov_b32 s98, 256")
    e("s_mov_b32 s99, 0x20000")
    e(f"s_mov_b32 {s(sWR)}, 0")
    e(f"s_mov_b32 {s(sKOFF)}, 0")
    e(f"s_mov_b32 {s(sVOFF)}, 0")
    QROT = int(os.environ.get("QROT", "1"))
    if QROT:
        if MAP == 0:
            e(f"s_lshr_b32 s3, {s(sH)}, 3")
            e("s_lshl_b32 s3, s3, 1")
        else:
            e(f"s_and_b32 s3, {s(sH)}, 7")
        e(f"s_add_u32 s3, s3, {s(sB)}")
        e("s_cmp_ge_u32 s3, 9")
        e("s_cselect_b32 s4, 9, 0")
        e("s_sub_u32 s3, s3, s4")
        e(f"s_lshl_b32 {s(sWOFF)}, s3, 19")
        e(f"s_lshl_b32 {s(sXOFF)}, s3, 7")
    else:
        e(f"s_mov_b32 {s(sWOFF)}, 0")
        e(f"s_mov_b32 {s(sXOFF)}, 0")

    def adv_wr():
        e(f"s_add_u32 {s(sWR)}, {s(sWR)}, {SLOT}")
        e(f"s_cmp_eq_u32 {s(sWR)}, {SLOT * NSLOT}")
        e(f"s_cselect_b32 {s(sWR)}, 0, {s(sWR)}")

    def dma_parts(kind, tag):
        g = []
        first = [f"s_add_u32 m0, {s(sWR)}, {s(sWAVE)}",
                 f"s_add_u32 {s(sWR)}, {s(sWR)}, {SLOT}"]
        for n in range(4):
            if kind == "W":
                i = f"buffer_load_dwordx4 {v(vOW + n)}, {s(SW, 4)}, {s(sWOFF)} offen offset:{1024 * n} lds"
            elif kind == "X":
                i = f"buffer_load_dwordx4 {v(vOX + n)}, {s(SX, 4)}, {s(sXOFF)} offen offset:{1024 * n} lds"
            elif kind == "K":
                i = f"buffer_load_dwordx4 {v(vOK + n)}, {s(SK, 4)}, {s(sKOFF)} offen offset:{1024 * n}{NT} lds"
            else:
                i = f"buffer_load_dwordx4 {v(vOV)}, {s(SV, 4)}, {s(sVOFF)} offen offset:{1024 * n}{NT} lds"
            g.append((first if n == 0 else []) + [i])
        so, inc = {"W": (sWOFF, 64 * 8192), "X": (sXOFF, 128), "K": (sKOFF, SLOT), "V": (sVOFF, SLOT)}[kind]
        g[-1] += [f"s_add_u32 {s(so)}, {s(so)}, {inc}",
                  f"s_cmp_eq_u32 {s(sWR)}, {SLOT * NSLOT}",
                  f"s_cselect_b32 {s(sWR)}, 0, {s(sWR)}"]
        if kind in "XW":
            g[-1] += [f"s_cmp_eq_u32 {s(so)}, {9 * inc}",
                      f"s_cselect_b32 {s(so)}, 0, {s(so)}"]
        return g

    def emit_group(g, tag):
        for i in g:
            e(i)
            if i.startswith("buffer_load"):
                vmq.append(tag)

    def dma(kind, tag):
        for g in dma_parts(kind, tag):
            emit_group(g, tag)

    def rload(i, kind):
        for n in range(4):
            r = vR + 16 * i + 4 * n
            if kind == "K":
                e(f"buffer_load_dwordx4 {v(r, 4)}, {v(vOK + n)}, {s(SK, 4)}, {s(sKOFF)} offen offset:{1024 * n}{NT}")
            else:
                e(f"buffer_load_dwordx4 {v(r, 4)}, {v(vOV)}, {s(SV, 4)}, {s(sVOFF)} offen offset:{1024 * n}{NT}")
            vmq.append(f"R{i}")
        so = sKOFF if kind == "K" else sVOFF
        e(f"s_add_u32 {s(so)}, {s(so)}, {SLOT}")

    def rdump(i):
        vm_wait(f"R{i}")
        e(f"v_add_u32 {v(vT0)}, {s(sWR)}, {v(vDW)}")
        adv_wr()
        for n in range(4):
            e(f"ds_write_b128 {v(vT0)}, {v(vR + 16 * i + 4 * n, 4)} offset:{1024 * n}")
            lgq.append("dump")

    RK = ["K", "K", "V", "K"]

    def tr_rd(f, nfr=NFR):
        u, D = f >> 2, f & 3
        r = vFR + 4 * (f % nfr)
        e(f"ds_read_b64_tr_b16 {v(r, 2)}, {v(vTRA + D)} offset:{4096 * u}")
        e(f"ds_read_b64_tr_b16 {v(r + 2, 2)}, {v(vTRA + D)} offset:{4096 * u + 1024}")
        lgq.extend([f"F{f}", f"F{f}"])

    QFR = 88
    NQF = 8

    def q_rd(f):
        u, D = f >> 2, f & 3
        r = QFR + 4 * (f % NQF)
        e(f"ds_read_b64_tr_b16 {v(r, 2)}, {v(vTRA + D)} offset:{4096 * u}")
        e(f"ds_read_b64_tr_b16 {v(r + 2, 2)}, {v(vTRA + D)} offset:{4096 * u + 1024}")
        lgq.extend([f"F{f}", f"F{f}"])

    def qphase(RSCHED):
        useR = RSCHED is not None
        RSCHED = RSCHED or {}

        def parts(kind, slot, tag):
            g = dma_parts(kind, tag)
            g[0] = [f"s_mov_b32 {s(sWR)}, {slot * SLOT}"] + g[0]
            return [("g", x, tag) for x in g]

        def kv_acts(i):
            if useR:
                return [("dump", i)]
            return parts(RK[i], i, f"KV{i}")

        def do(x):
            if x[0] == "g":
                emit_group(x[1], x[2])
            elif x[0] == "dump":
                e(f"s_mov_b32 {s(sWR)}, {x[1] * SLOT}")
                rdump(x[1])
            elif x[0] == "lgw":
                lg_wait(x[1])
            else:
                rload(x[1], RK[x[1]])

        for i in RSCHED.get(-2, []):
            rload(i, RK[i])
        for x in parts("X", 3, "X0") + parts("W", 0, "W0") + parts("X", 4, "X1") + parts("W", 1, "W1") + parts("W", 2, "W2"):
            do(x)
        for i in RSCHED.get(-1, []):
            rload(i, RK[i])
        for q in range(9):
            vm_wait(f"X{q}")
            vm_wait(f"W{q}")
            lg_all()
            e("s_barrier")
            stamp()
            e(f"ds_read_b128 {v(vX, 4)}, {v(vXA)}")
            lgq.append("x0")
            for f in range(2):
                q_rd(f)
            for u in range(1, 4):
                e(f"ds_read_b128 {v(vX + 4 * u, 4)}, {v(vXA + u)}")
                lgq.append(f"x{u}")
            for f in range(2, 5):
                q_rd(f)
            nxt = 5
            acts = []
            if 1 <= q <= 6:
                acts += parts("W", (q + 2) % 3, f"W{q + 2}")
            if q >= 7:
                acts += kv_acts(q - 7)
            if q <= 6:
                acts += [("lgw", "x3")] + parts("X", 3 + q % 2, f"X{q + 2}")
            for i in RSCHED.get(q, []):
                acts.append(("rload", i))
            dx = SLOT if q % 2 == 0 else -SLOT
            for f in range(16):
                u, D = f >> 2, f & 3
                lg_wait(f"F{f}")
                if D == 0:
                    lg_wait(f"x{u}")
                r = QFR + 4 * (f % NQF)
                c = "0" if (q == 0 and u == 0) else v(vACC + 16 * D, 16)
                e(f"v_mfma_f32_32x32x16_bf16 {v(vACC + 16 * D, 16)}, {v(r, 4)}, {v(vX + 4 * u, 4)}, {c}")
                while nxt < 16 and nxt <= f + NQF - 2 and len(lgq) <= 12:
                    q_rd(nxt)
                    nxt += 1
                    if nxt > f + 6:
                        break
                if f == 0 and q < 8:
                    for u2 in range(4):
                        e(f"v_add_u32 {v(vXA + u2)}, {dx & 0xffffffff:#x}, {v(vXA + u2)}")
                if acts and (acts[0][0] != "dump" or len(lgq) <= 11):
                    x = acts.pop(0)
                    do(x)
                    if x[0] == "lgw":
                        do(acts.pop(0))
            assert nxt == 16
            for x in acts:
                do(x)
            if q < 8:
                dw = ((q + 1) % 3 - q % 3) * SLOT
                for D in range(4):
                    e(f"v_add_u32 {v(vTRA + D)}, {dw & 0xffffffff:#x}, {v(vTRA + D)}")
        vm_wait("KV0")
        lg_all()
        e("s_barrier")
        stamp()
        for x in kv_acts(2) + kv_acts(3):
            do(x)
        lg_all()
        del vmq[:]

    RA = eval(os.environ.get("RA", "None"))
    RB = eval(os.environ.get("RB", "None"))
    if int(os.environ.get("XWPF", "0")):
        e("s_cmp_lt_u32 s2, 256")
        e("s_cbranch_scc1 L_attn_nopf")
        e("s_bfe_u32 s3, s2, 0x50003")
        e("s_mul_i32 s4, s3, 36864")
        e(f"s_add_u32 s92, {s(sPTR)}, s4")
        e(f"s_addc_u32 s93, {s(sPTR + 1)}, 0")
        e("s_mov_b32 s94, 36864")
        e("s_mov_b32 s95, 0x20000")
        e(f"s_mul_i32 s4, s3, {18 * 8192}")
        e("s_and_b32 s3, s2, 3")
        e("s_lshl_b32 s3, s3, 11")
        e("s_add_u32 s4, s4, s3")
        e(f"s_add_u32 s4, {s(sPTR + 6)}, s4")
        e(f"s_addc_u32 s5, {s(sPTR + 7)}, 0")
        e(f"s_mov_b32 s6, {17 * 8192 + 2048}")
        e("s_mov_b32 s7, 0x20000")
        e(f"v_lshlrev_b32 {v(vT0)}, 4, v0")
        e(f"v_lshrrev_b32 {v(vT1)}, 7, v0")
        e(f"v_and_b32 {v(vT2)}, 127, v0")
        e(f"v_lshlrev_b32 {v(vT2)}, 4, {v(vT2)}")
        e(f"v_lshl_add_u32 {v(vT1)}, {v(vT1)}, 13, {v(vT2)}")
        for i in range(9):
            e(f"s_mov_b32 s3, {4096 * i}")
            e(f"buffer_load_dwordx4 {v(vACC + 8 * i, 4)}, {v(vT0)}, s[92:95], s3 offen")
            e(f"s_mov_b32 s3, {16384 * i}")
            e(f"buffer_load_dwordx4 {v(vACC + 8 * i + 4, 4)}, {v(vT1)}, s[4:7], s3 offen")
        e("s_waitcnt vmcnt(0)")
        e("L_attn_nopf:")
    if RA == RB:
        qphase(RA)
    else:
        e(f"s_cmp_lt_u32 s2, 256")
        e("s_cbranch_scc0 L_attn_qb")
        n0 = nst[0]
        qphase(RA)
        e("s_branch L_attn_qdone")
        e("L_attn_qb:")
        nst[0] = n0
        qphase(RB)
    e("L_attn_qdone:")
    trbase(False, 2)
    e(f"v_and_b32 {v(vT0)}, 0x13, {v(vLANE)}")
    e(f"v_bfe_u32 {v(vT1)}, {v(vLANE)}, 2, 1")
    e(f"v_lshl_or_b32 {v(vT0)}, {v(vT1)}, 3, {v(vT0)}")
    e(f"v_bfe_u32 {v(vT1)}, {v(vLANE)}, 3, 1")
    e(f"v_lshl_or_b32 {v(vT0)}, {v(vT1)}, 2, {v(vT0)}")
    e(f"v_and_b32 {v(vT1)}, 15, {v(vT0)}")
    e(f"v_lshrrev_b32 {v(vT2)}, 5, {v(vLANE)}")
    e(f"v_xor_b32 {v(vT1)}, {v(vT1)}, {v(vT2)}")
    e(f"v_lshlrev_b32 {v(vT0)}, 8, {v(vT0)}")
    e(f"v_add_u32 {v(vT0)}, {0}, {v(vT0)}")
    for t in range(8):
        e(f"v_xor_b32 {v(vT2)}, {2 * t}, {v(vT1)}")
        e(f"v_lshl_add_u32 {v(vKA + t)}, {v(vT2)}, 4, {v(vT0)}")
    e(f"v_bfe_u32 {v(vT0)}, {v(vLANE)}, 4, 1")
    e(f"v_lshl_add_u32 {v(vT0)}, {s(sW)}, 1, {v(vT0)}")
    e(f"v_lshlrev_b32 {v(vT0)}, 17, {v(vT0)}")
    e(f"v_and_b32 {v(vT1)}, 15, {v(vLANE)}")
    e(f"v_lshrrev_b32 {v(vT2)}, 5, {v(vLANE)}")
    e(f"v_lshl_add_u32 {v(vT1)}, {v(vT2)}, 4, {v(vT1)}")
    e(f"v_lshl_add_u32 {v(vOO)}, {v(vT1)}, 4, {v(vT0)}")
    for i in range(64):
        e(f"v_mul_f32 {v(vACC + i)}, {s(sC)}, {v(vACC + i)}")
    for i in range(32):
        e(f"v_cvt_pk_bf16_f32 {v(vQ + i)}, {v(vACC + 2 * i)}, {v(vACC + 2 * i + 1)}")
    for i in range(64):
        e(f"v_mov_b32 {v(vACC + i)}, 0")
    e(f"s_mov_b32 {s(sFLAG)}, 0")
    e(f"s_mov_b32 {s(sC)}, {f32bits(THR):#x}")
    e(f"v_mov_b32 {v(vLs)}, 0")
    e(f"s_mov_b32 {s(sCNT)}, 0")
    e(f"s_mov_b32 {s(sKS)}, {0}")
    e(f"s_mov_b32 {s(sVS)}, {2 * SLOT}")
    lg_all()

    def k_rd(f):
        kb, t = f >> 3, f & 7
        e(f"ds_read_b128 {v(vKF + 4 * (f % NKF), 4)}, {v(vKA + t)} offset:{8192 * kb}")
        lgq.append(f"K{f}")

    def qk_slot(f, S, first=False):
        kb, t = f >> 3, f & 7
        lg_wait(f"K{f}")
        c = ("0" if first else v(vNM, 16)) if t == 0 else v(S + 16 * kb, 16)
        e(f"v_mfma_f32_32x32x16_bf16 {v(S + 16 * kb, 16)}, {v(vKF + 4 * (f % NKF), 4)}, {v(vQ + 4 * t, 4)}, {c}")
        if f + NKF - 1 < 16:
            k_rd(f + NKF - 1)

    slow = []

    def sm1(S, lab):
        a = [f"v_max3_f32 {v(vU0)}, {v(S + 0)}, {v(S + 1)}, {v(S + 2)}",
             f"v_max3_f32 {v(vU1)}, {v(S + 3)}, {v(S + 4)}, {v(S + 5)}"]
        for k, i in enumerate(range(6, 16, 2)):
            u = vU0 if k % 2 == 0 else vU1
            a.append(f"v_max3_f32 {v(u)}, {v(u)}, {v(S + i)}, {v(S + i + 1)}")
        b = []
        for k, i in enumerate(range(16, 32, 2)):
            u = vU1 if k % 2 == 0 else vU0
            b.append(f"v_max3_f32 {v(u)}, {v(u)}, {v(S + i)}, {v(S + i + 1)}")
        b += [f"v_max_f32 {v(vU0)}, {v(vU0)}, {v(vU1)}",
              f"v_mov_b32 {v(vU1)}, {v(vU0)}",
              "s_nop 1",
              f"v_permlane32_swap_b32 {v(vU0)}, {v(vU1)}",
              f"v_max_f32 {v(vU0)}, {v(vU0)}, {v(vU1)}"]
        if lab is None:
            for i in range(32):
                b.append(f"v_sub_f32 {v(S + i)}, {v(S + i)}, {v(vU0)}")
            for i in range(16):
                b.append(f"v_sub_f32 {v(vNM + i)}, 0, {v(vU0)}")
            return a, b
        b += [f"v_cmp_lt_f32 vcc, {s(sC)}, {v(vU0)}",
              f"s_cbranch_vccnz L_slow_{lab}",
              f"L_back_{lab}:"]
        slow.append(f"L_slow_{lab}:")
        slow.append(f"v_max_f32 {v(vU0)}, 0, {v(vU0)}")
        slow.append(f"v_sub_f32 {v(vAL)}, 0, {v(vU0)}")
        slow.append(f"v_exp_f32 {v(vAL)}, {v(vAL)}")
        for i in range(32):
            slow.append(f"v_sub_f32 {v(S + i)}, {v(S + i)}, {v(vU0)}")
        for i in range(16):
            slow.append(f"v_sub_f32 {v(vNM + i)}, {v(vNM + i)}, {v(vU0)}")
        slow.append(f"s_mov_b32 {s(sFLAG)}, 1")
        slow.append(f"s_branch L_back_{lab}")
        return a, b

    def rs_check(lab):
        e(f"s_cmp_lg_u32 {s(sFLAG)}, 0")
        e(f"s_cbranch_scc1 L_rs_{lab}")
        e(f"L_rsback_{lab}:")
        slow.append(f"L_rs_{lab}:")
        slow.append(f"v_mul_f32 {v(vLs)}, {v(vLs)}, {v(vAL)}")
        for i in range(64):
            slow.append(f"v_mul_f32 {v(vACC + i)}, {v(vACC + i)}, {v(vAL)}")
        slow.append(f"s_mov_b32 {s(sFLAG)}, 0")
        slow.append(f"s_branch L_rsback_{lab}")

    NEXP2 = int(os.environ.get("NEXP2", "20"))

    def exps(S, lo, hi):
        return [f"v_exp_f32 {v(S + i)}, {v(S + i)}" for i in range(lo, hi)]

    def sm2_rest(S):
        r = exps(S, NEXP2, 32)
        r += [f"v_add_f32 {v(vU0)}, {v(S + 0)}, {v(S + 1)}",
              f"v_add_f32 {v(vU1)}, {v(S + 2)}, {v(S + 3)}",
              f"v_add_f32 {v(vU2)}, {v(S + 4)}, {v(S + 5)}",
              f"v_add_f32 {v(vU3)}, {v(S + 6)}, {v(S + 7)}"]
        for i in range(8, 32, 4):
            r += [f"v_add_f32 {v(vU0)}, {v(vU0)}, {v(S + i)}",
                  f"v_add_f32 {v(vU1)}, {v(vU1)}, {v(S + i + 1)}",
                  f"v_add_f32 {v(vU2)}, {v(vU2)}, {v(S + i + 2)}",
                  f"v_add_f32 {v(vU3)}, {v(vU3)}, {v(S + i + 3)}"]
        for i in range(16):
            r.append(f"v_cvt_pk_bf16_f32 {v(vP + i)}, {v(S + 2 * i)}, {v(S + 2 * i + 1)}")
        r += [f"v_add_f32 {v(vU0)}, {v(vU0)}, {v(vU1)}",
              f"v_add_f32 {v(vU2)}, {v(vU2)}, {v(vU3)}",
              f"v_add_f32 {v(vLs)}, {v(vLs)}, {v(vU0)}",
              f"v_add_f32 {v(vLs)}, {v(vLs)}, {v(vU2)}"]
        return r

    def cost(i):
        if i.startswith("v_exp"):
            return 2
        if i.endswith(":"):
            return 0
        return 1

    def spread(lst, nslots, lead=0):
        tot = sum(cost(i) for i in lst) - lead
        out = [[] for _ in range(nslots + 1)]
        acc = 0
        k = 0
        for i in lst:
            if k == 0 and acc + cost(i) > lead:
                k = 1
                acc = 0
            if k >= 1:
                while k < nslots and acc + cost(i) / 2 > tot * k / nslots:
                    k += 1
            out[k].append(i)
            acc += cost(i)
        return out

    def adv_slot(sreg, sdel):
        e(f"s_add_u32 {s(sdel)}, {s(sreg)}, {2 * SLOT}")
        e(f"s_cmp_ge_u32 {s(sdel)}, {SLOT * NSLOT}")
        e(f"s_cselect_b32 {s(sTO)}, {SLOT * NSLOT}, 0")
        e(f"s_sub_u32 {s(sdel)}, {s(sdel)}, {s(sTO)}")
        e(f"s_sub_u32 {s(sTO)}, {s(sdel)}, {s(sreg)}")
        e(f"s_mov_b32 {s(sreg)}, {s(sdel)}")
        e(f"s_mov_b32 {s(sdel)}, {s(sTO)}")

    for f in range(NKF - 1):
        k_rd(f)
    for f in range(16):
        qk_slot(f, vS[0], True)
    for t in range(8):
        e(f"v_add_u32 {v(vKA + t)}, {SLOT}, {v(vKA + t)}")
    e(f"s_mov_b32 {s(sKS)}, {SLOT}")
    a, b = sm1(vS[0], None)
    e("s_nop 3")
    for i in a + b + exps(vS[0], 0, NEXP2):
        e(i)
    stamp()
    assert not lgq
    vm_state = list(vmq)
    if STAMP:
        e("s_mov_b32 s94, 0")
        e("v_mov_b32 v15, 0")

    e("L_attn_loop:")
    for par in range(2):
        Sc, Sn = vS[par], vS[1 - par]
        if STAMP:
            e("s_memtime s[92:93]")
            e("s_waitcnt lgkmcnt(0)")
            e(f"v_cmp_eq_u32 vcc, s94, {v(vLANE)}")
            e("v_mov_b32 v18, s92")
            e("s_nop 1")
            e("v_cndmask_b32 v15, v15, v18, vcc")
            e("s_add_u32 s94, s94, 1")
        e("s_waitcnt vmcnt(4)")
        e("s_barrier")
        if STAMP:
            e("s_memtime s[92:93]")
            e("s_waitcnt lgkmcnt(0)")
            e(f"v_cmp_eq_u32 vcc, s94, {v(vLANE)}")
            e("v_mov_b32 v18, s92")
            e("s_nop 1")
            e("v_cndmask_b32 v15, v15, v18, vcc")
            e("s_add_u32 s94, s94, 1")
        for f in range(NKF - 1):
            k_rd(f)
        dparts = dma_parts("V", "x") + dma_parts("K", "x")
        ch = spread(sm2_rest(Sc), 16, lead=12)
        for i in ch[0]:
            e(i)
        adv_slot(sKS, sD0)
        adv_slot(sVS, sD1)
        for f in range(16):
            qk_slot(f, Sn)
            if f == 2:
                rs_check(par)
            if f % 2 == 0:
                for i in dparts[f // 2]:
                    e(i)
            if f >= 16 - (NFR - 1):
                tr_rd(f - (16 - (NFR - 1)))
            if f == 12:
                for t in range(8):
                    e(f"v_add_u32 {v(vKA + t)}, {s(sD0)}, {v(vKA + t)}")
            for i in ch[f + 1]:
                e(i)
        a, b = sm1(Sn, par)
        ch = spread(b + exps(Sn, 0, NEXP2), 14)
        for f in range(16):
            u, D = f >> 2, f & 3
            lg_wait(f"F{f}")
            r = vFR + 4 * (f % NFR)
            e(f"v_mfma_f32_32x32x16_bf16 {v(vACC + 16 * D, 16)}, {v(r, 4)}, {v(vP + 4 * u, 4)}, {v(vACC + 16 * D, 16)}")
            if f + NFR - 1 < 16:
                tr_rd(f + NFR - 1)
            if f == 0:
                for i in a:
                    e(i)
            if f == 16 - NFR:
                for D2 in range(4):
                    e(f"v_add_u32 {v(vTRA + D2)}, {s(sD1)}, {v(vTRA + D2)}")
            if f >= 2:
                for i in ch[f - 1]:
                    e(i)
        assert not lgq
    e(f"s_add_u32 {s(sCNT)}, {s(sCNT)}, 1")
    e(f"s_cmp_lt_u32 {s(sCNT)}, 8")
    e("s_cbranch_scc1 L_attn_loop")

    stamp()
    if int(os.environ.get("WOPF", "1")):
        e(f"s_mul_i32 s3, {s(sBLK)}, 40")
        e("s_add_u32 s4, s0, s3")
        e("s_addc_u32 s5, s1, 0")
        e("s_load_dwordx2 s[4:5], s[4:5], 32")
        e("s_and_b32 s3, s2, 3")
        e("s_lshl_b32 s3, s3, 6")
        e("s_lshr_b32 s6, s2, 3")
        e("s_add_u32 s3, s3, s6")
        e("s_mul_i32 s3, s3, 18432")
        e(f"v_lshlrev_b32 {v(vU2)}, 4, v0")
        e("s_waitcnt lgkmcnt(0)")
        e("s_add_u32 s4, s4, s3")
        e("s_addc_u32 s5, s5, 0")
        e("s_mov_b32 s6, 18432")
        e("s_mov_b32 s7, 0x20000")
        for i in range(5):
            e(f"s_movk_i32 s3, {4096 * i}")
            e(f"buffer_load_dwordx4 {v(vKF + 4 * (i % 4), 4) if i < 4 else v(vFR, 4)}, {v(vU2)}, s[4:7], s3 offen")
    e(f"s_add_u32 s3, s2, {s(sW)}")
    e("s_cmp_eq_u32 s3, 0")
    e("s_cbranch_scc0 L_attn_nononce")
    e("s_memrealtime s[6:7]")
    e(f"s_add_u32 s4, {s(sWS)}, {56 << 20}")
    e(f"s_addc_u32 s5, {s(sWS + 1)}, 0")
    e("s_waitcnt lgkmcnt(0)")
    e(f"v_mov_b32 {v(vU0)}, s6")
    e(f"v_mov_b32 {v(vU1)}, 0")
    e("s_mov_b32 s6, 4")
    e("s_mov_b32 s7, 0x20000")
    e(f"buffer_store_dword {v(vU0)}, {v(vU1)}, s[4:7], 0 offen")
    e("L_attn_nononce:")
    e(f"v_mov_b32 {v(vU1)}, {v(vLs)}")
    e("s_nop 1")
    e(f"v_permlane32_swap_b32 {v(vLs)}, {v(vU1)}")
    e(f"v_add_f32 {v(vLs)}, {v(vLs)}, {v(vU1)}")
    e(f"v_rcp_f32 {v(vLs)}, {v(vLs)}")
    e("s_nop 7")
    e("s_nop 3")
    for i in range(64):
        e(f"v_mul_f32 {v(vACC + i)}, {v(vACC + i)}, {v(vLs)}")
    for D in range(4):
        for p in range(2):
            r = vS[0] + 8 * D + 4 * p
            a = vACC + 16 * D + 4 * p
            e(f"v_cvt_pk_bf16_f32 {v(r)}, {v(a)}, {v(a + 1)}")
            e(f"v_cvt_pk_bf16_f32 {v(r + 1)}, {v(a + 2)}, {v(a + 3)}")
            e(f"v_cvt_pk_bf16_f32 {v(r + 2)}, {v(a + 8)}, {v(a + 9)}")
            e(f"v_cvt_pk_bf16_f32 {v(r + 3)}, {v(a + 10)}, {v(a + 11)}")
            e(f"buffer_store_dwordx4 {v(r, 4)}, {v(vOO)}, {s(SO, 4)}, 0 offen offset:{1024 * D + 512 * p}{os.environ.get('OST', ' sc1')}")
    e("s_waitcnt vmcnt(0)")
    if DIAG:
        e(f"s_cmp_eq_u32 {s(sW)}, 0")
        e("s_cbranch_scc0 L_attn_end")
        e("s_memrealtime s[92:93]")
        e("s_lshl_b32 s3, s2, 3")
        e(f"s_add_u32 s3, s3, {57 << 20}")
        e(f"s_add_u32 s4, {s(sWS)}, s3")
        e(f"s_addc_u32 s5, {s(sWS + 1)}, 0")
        e("s_mov_b32 s6, 8")
        e("s_mov_b32 s7, 0x20000")
        e("s_waitcnt lgkmcnt(0)")
        e("v_mov_b32 v2, s90")
        e("v_mov_b32 v3, s92")
        e("v_mov_b32 v1, 0")
        e("buffer_store_dwordx2 v[2:3], v1, s[4:7], 0 offen")
        e("s_waitcnt vmcnt(0)")
    if STAMP:
        stamp()
        stamp(True)
        e(f"s_lshl_b32 s3, s2, 10")
        e(f"s_lshl_b32 s4, {s(sW)}, 8")
        e(f"s_add_u32 s3, s3, s4")
        e(f"s_add_u32 s3, s3, {64 << 20}")
        e(f"s_add_u32 {s(SO)}, {s(sWS)}, s3")
        e(f"s_addc_u32 {s(SO + 1)}, {s(sWS + 1)}, 0")
        e(f"s_mov_b32 {s(SO + 2)}, 256")
        e("v_mov_b32 v1, 0")
        for i in range(nst[0]):
            e(f"v_mov_b32 v2, {s(56 + 2 * i)}")
            e(f"v_mov_b32 v3, {s(57 + 2 * i)}")
            e(f"buffer_store_dwordx2 v[2:3], v1, {s(SO, 4)}, 0 offen offset:{8 * i}")
            e("s_waitcnt vmcnt(0)")
        print("attn nstamps", nst[0])
        e(f"s_add_u32 {s(SO)}, {s(SO)}, {1 << 20}")
        e(f"s_addc_u32 {s(SO + 1)}, {s(SO + 1)}, 0")
        e(f"v_lshlrev_b32 v1, 2, {v(vLANE)}")
        e(f"buffer_store_dword v15, v1, {s(SO, 4)}, 0 offen")
        e("s_waitcnt vmcnt(0)")
    e("L_attn_end:")
    e("s_endpgm")
    for i in slow:
        e(i)


def gen_oproj():
    SW, SOo, SP, SD, SOUT = 8, 12, 16, 20, 24
    sBLK, sSP, sB, sCT, sW = 28, 29, 30, 31, 32
    sWO, sWS, sOUT, sDBG = 34, 36, 38, 40
    sM0, sWOFF, sOOFF, sT = 42, 43, 44, 45
    sTILE = 46
    sNON = 47
    sROT, sOOFF2, sM2 = 48, 49, 50
    KSL = 10240
    STG = 4 * KSL
    NS = 4
    vLANE, vT0, vT1, vT2, vT3 = 1, 2, 3, 4, 5
    vOW = 6
    vOO = 15
    vTRB = 17
    vTRA = 18
    vPO = 19
    vACC = 24
    vFR = 96
    NFR = 8
    vOB = 128

    STAMP = int(os.environ.get("STAMP2", "0"))
    nst = [0]

    def stamp(real=False):
        if not STAMP:
            return
        r = 56 + 2 * nst[0]
        nst[0] += 1
        assert r + 1 < 100
        e(f"{'s_memrealtime' if real else 's_memtime'} {s(r, 2)}")
        e("s_waitcnt lgkmcnt(0)")

    e("oproj_kernel:")
    e("s_cmp_ge_u32 s2, 256")
    e("s_cbranch_scc1 L_op_end")
    DIAG = int(os.environ.get("DIAG", "0"))
    if DIAG:
        e("s_memrealtime s[90:91]")
        e("s_waitcnt lgkmcnt(0)")
    stamp(True)
    stamp()
    e(f"s_and_b32 {s(sSP)}, s2, 3")
    e(f"s_bfe_u32 {s(sBLK)}, s2, 0x10002")
    e(f"s_bfe_u32 {s(sCT)}, s2, 0x20003")
    e(f"s_lshr_b32 {s(sB)}, s2, 5")
    e(f"s_mul_i32 s3, {s(sBLK)}, 40")
    e("s_add_u32 s4, s0, s3")
    e("s_addc_u32 s5, s1, 0")
    e(f"s_load_dwordx2 {s(sWO, 2)}, s[4:5], 32")
    e(f"s_load_dwordx2 {s(sOUT, 2)}, s[0:1], 80")
    e(f"s_load_dwordx2 {s(sDBG, 2)}, s[0:1], 88")
    e(f"s_load_dwordx2 {s(sWS, 2)}, s[0:1], 96")
    e(f"v_and_b32 {v(vLANE)}, 63, v0")
    e(f"v_lshrrev_b32 {v(vT0)}, 6, v0")
    e("s_nop 0")
    e(f"v_readfirstlane_b32 {s(sW)}, {v(vT0)}")
    e(f"v_lshl_add_u32 {v(vT0)}, {v(vT0)}, 6, {v(vLANE)}")
    for n in range(3):
        e(f"v_add_u32 {v(vT1)}, {256 * n}, {v(vT0)}")
        e(f"v_mul_u32_u24 {v(vT2)}, 3641, {v(vT1)}")
        e(f"v_lshrrev_b32 {v(vT2)}, 16, {v(vT2)}")
        e(f"v_mul_u32_u24 {v(vT3)}, 18, {v(vT2)}")
        e(f"v_sub_u32 {v(vT3)}, {v(vT1)}, {v(vT3)}")
        e(f"v_mul_u32_u24 {v(vT2)}, 1152, {v(vT2)}")
        e(f"v_lshl_add_u32 {v(vOW + n)}, {v(vT3)}, 4, {v(vT2)}")
    e(f"v_cmp_gt_u32 vcc, 576, {v(vT1)}")
    e(f"v_mov_b32 {v(vT2)}, 0x7ffffff0")
    e("s_nop 1")
    e(f"v_cndmask_b32 {v(vOW + 2)}, {v(vT2)}, {v(vOW + 2)}, vcc")
    e(f"v_lshrrev_b32 {v(vT0)}, 2, {v(vLANE)}")
    e(f"v_mul_u32_u24 {v(vT0)}, 288, {v(vT0)}")
    e(f"v_and_b32 {v(vT1)}, 3, {v(vLANE)}")
    e(f"v_lshl_add_u32 {v(vTRB)}, {v(vT1)}, 3, {v(vT0)}")
    e(f"s_lshl_b32 s3, {s(sW)}, 18")
    e(f"s_lshl_b32 s4, {s(sSP)}, 15")
    e("s_add_u32 s3, s3, s4")
    e(f"v_lshlrev_b32 {v(vT0)}, 4, {v(vLANE)}")
    e(f"v_add_u32 {v(vOO)}, s3, {v(vT0)}")
    e(f"v_add_u32 {v(vOO + 1)}, 0x20000, {v(vOO)}")
    e("s_waitcnt lgkmcnt(0)")
    e(f"s_mul_i32 s3, {s(sSP)}, {1024 * 1152}")
    e(f"s_mul_i32 s4, {s(sCT)}, 288")
    e("s_add_u32 s3, s3, s4")
    e(f"s_add_u32 {s(SW)}, {s(sWO)}, s3")
    e(f"s_addc_u32 {s(SW + 1)}, {s(sWO + 1)}, 0")
    e(f"s_sub_u32 {s(SW + 2)}, {4096 * 1152}, s3")
    e(f"s_mov_b32 {s(SW + 3)}, 0x20000")
    e(f"s_lshl_b32 s3, {s(sBLK)}, 3")
    e(f"s_add_u32 s3, s3, {s(sB)}")
    e(f"s_lshl_b32 {s(sTILE)}, s3, 2")
    e(f"s_add_u32 {s(sTILE)}, {s(sTILE)}, {s(sCT)}")
    e("s_lshl_b32 s3, s3, 20")
    e(f"s_add_u32 {s(SOo)}, {s(sWS)}, s3")
    e(f"s_addc_u32 {s(SOo + 1)}, {s(sWS + 1)}, 0")
    e(f"s_mov_b32 {s(SOo + 2)}, {1 << 20}")
    e(f"s_mov_b32 {s(SOo + 3)}, 0x20000")
    e(f"s_mul_i32 s3, {s(sTILE)}, {16 * 18432}")
    e(f"s_add_u32 s3, s3, {16 << 20}")
    e(f"s_add_u32 {s(SP)}, {s(sWS)}, s3")
    e(f"s_addc_u32 {s(SP + 1)}, {s(sWS + 1)}, 0")
    e(f"s_mov_b32 {s(SP + 2)}, {16 * 18432}")
    e(f"s_mov_b32 {s(SP + 3)}, 0x20000")
    e(f"s_mov_b32 {s(SD)}, {s(sDBG)}")
    e(f"s_mov_b32 {s(SD + 1)}, {s(sDBG + 1)}")
    e(f"s_mov_b32 {s(SD + 2)}, 256")
    e(f"s_mov_b32 {s(SD + 3)}, 0x20000")
    e(f"s_lshl_b32 s3, {s(sB)}, 7")
    e(f"s_lshl_b32 s4, {s(sW)}, 5")
    e("s_add_u32 s3, s3, s4")
    e("s_mul_i32 s3, s3, 2304")
    e(f"s_mul_i32 s4, {s(sBLK)}, 1152")
    e("s_add_u32 s3, s3, s4")
    e(f"s_mul_i32 s4, {s(sCT)}, 288")
    e("s_add_u32 s3, s3, s4")
    e(f"s_add_u32 {s(SOUT)}, {s(sOUT)}, s3")
    e(f"s_addc_u32 {s(SOUT + 1)}, {s(sOUT + 1)}, 0")
    e(f"s_sub_u32 {s(SOUT + 2)}, {1024 * 2304}, s3")
    e(f"s_mov_b32 {s(SOUT + 3)}, 0x20000")
    e(f"s_lshl_b32 {s(sM0)}, {s(sW)}, 10")
    e(f"s_cmp_eq_u32 {s(sW)}, 0")
    e(f"s_movk_i32 {s(sM2)}, 9216")
    e(f"s_cselect_b32 {s(sM2)}, 8192, {s(sM2)}")
    if int(os.environ.get("K2ROT", "0")):
        e(f"s_lshl_b32 {s(sROT)}, {s(sCT)}, 1")
        e(f"s_add_u32 {s(sROT)}, {s(sROT)}, {s(sB)}")
    else:
        e(f"s_mov_b32 {s(sROT)}, 0")
    e(f"s_add_u32 s4, {s(sWS)}, {56 << 20}")
    e(f"s_addc_u32 s5, {s(sWS + 1)}, 0")
    e(f"s_load_dword {s(sNON)}, s[4:5], 0")
    e("s_waitcnt lgkmcnt(0)")

    vmq = []

    def vm_wait(tag):
        idx = max([i for i, t_ in enumerate(vmq) if t_ == tag], default=-1)
        if idx < 0:
            return
        e(f"s_waitcnt vmcnt({len(vmq) - 1 - idx})")
        del vmq[:idx + 1]

    def issue_parts(st):
        slot = (st % NS) * STG
        g = []
        for ks in range(4):
            for n in range(3):
                x = []
                if ks == 0 and n == 0:
                    x.append(f"s_add_u32 {s(sOOFF2)}, {s(sROT)}, {st}")
                    x.append(f"s_and_b32 {s(sOOFF2)}, {s(sOOFF2)}, 7")
                    x.append(f"s_mul_i32 {s(sWOFF)}, {s(sOOFF2)}, {128 * 1152}")
                    x.append(f"s_lshl_b32 {s(sOOFF)}, {s(sOOFF2)}, 12")
                elif n == 0:
                    x.append(f"s_add_u32 {s(sWOFF)}, {s(sWOFF)}, {32 * 1152}")
                if n < 2:
                    x.append(f"s_add_u32 m0, {s(sM0)}, {slot + ks * KSL + 4096 * n}")
                else:
                    x.append(f"s_add_u32 m0, {s(sM2)}, {slot + ks * KSL}")
                x.append("s_nop 0")
                x.append(f"buffer_load_dwordx4 {v(vOW + n)}, {s(SW, 4)}, {s(sWOFF)} offen lds")
                g.append((x, f"S{st}k{ks}"))
            for rh in range(2):
                r = vOB + 32 * (st % 4) + 8 * ks + 4 * rh
                g.append(([f"buffer_load_dwordx4 {v(r, 4)}, {v(vOO + rh)}, {s(SOo, 4)}, {s(sOOFF)} offen offset:{1024 * ks}"], f"S{st}k{ks}"))
        return g

    def emit_part(g):
        for i in g[0]:
            e(i)
        vmq.append(g[1])

    PRE = int(os.environ.get("K2PRE", "3"))
    FINE = int(os.environ.get("K2FINE", "2"))
    pend = []
    for st in range(PRE):
        for g in issue_parts(st):
            emit_part(g)
    for st in range(PRE, 3):
        pend += issue_parts(st)
    for st in range(8):
        if st + 3 < 8:
            later = issue_parts(st + 3)
        else:
            later = []
        for ks0 in range(4):
            if ks0 == 0 or st < FINE:
                vm_wait(f"S{st}k{ks0 if st < FINE else 3}")
                e("s_barrier")
                if ks0 == 0:
                    stamp()
                    pend += later
                    e(f"v_add_u32 {v(vTRA)}, {(st % NS) * STG}, {v(vTRB)}")
                lo = 9 * ks0
                hi = 9 * ks0 + 9 if st < FINE else 36

                def rd(f):
                    ks, nb = f // 9, f % 9
                    r = vFR + 4 * (f % NFR)
                    e(f"ds_read_b64_tr_b16 {v(r, 2)}, {v(vTRA)} offset:{ks * KSL + 32 * nb}")
                    e(f"ds_read_b64_tr_b16 {v(r + 2, 2)}, {v(vTRA)} offset:{ks * KSL + 16 * 288 + 32 * nb}")

                for f in range(lo, min(lo + NFR - 1, hi)):
                    rd(f)
                ILV = int(os.environ.get("K2ILV", "1"))
                for f in range(lo, hi):
                    ks, nb = f // 9, f % 9
                    inflight = min(NFR - 1, hi - f)
                    e(f"s_waitcnt lgkmcnt({2 * (inflight - 1)})")
                    r = vFR + 4 * (f % NFR)
                    f2 = f + NFR - 1
                    for rh in range(2):
                        a = vACC + 8 * nb + 4 * rh
                        c = "0" if (st == 0 and ks == 0) else v(a, 4)
                        ob = vOB + 32 * (st % 4) + 8 * ks + 4 * rh
                        e(f"v_mfma_f32_16x16x32_bf16 {v(a, 4)}, {v(r, 4)}, {v(ob, 4)}, {c}")
                        if ILV and f2 < hi:
                            r2 = vFR + 4 * (f2 % NFR) + 2 * rh
                            e(f"ds_read_b64_tr_b16 {v(r2, 2)}, {v(vTRA)} offset:{(f2 // 9) * KSL + 16 * 288 * rh + 32 * (f2 % 9)}")
                    if not ILV and f2 < hi:
                        rd(f2)
                    npop = 2 if len(pend) > 20 else 1
                    for _ in range(npop):
                        if pend:
                            emit_part(pend.pop(0))
        assert not pend or st < 2, (st, len(pend))
    stamp()
    vNB = 6
    vCK = 10
    e(f"s_mul_i32 s3, {s(sW)}, 18432")
    e(f"v_lshlrev_b32 {v(vT0)}, 4, {v(vLANE)}")
    e(f"v_add_u32 {v(vPO)}, s3, {v(vT0)}")
    for k in range(4):
        e(f"s_bfe_u32 s3, {s(sNON)}, {(8 << 16) | (8 * k):#x}")
        e(f"v_mov_b32 {v(vNB + k)}, s3")
    e("s_movk_i32 s5, 0xff")
    e(f"v_and_b32 {v(vT1)}, 15, {v(vLANE)}")
    e(f"v_mul_u32_u24 {v(vT1)}, 2304, {v(vT1)}")
    e(f"v_lshrrev_b32 {v(vT2)}, 4, {v(vLANE)}")
    e(f"v_lshl_add_u32 {v(vT1)}, {v(vT2)}, 3, {v(vT1)}")
    e(f"v_add_u32 {v(vT2)}, {16 * 2304}, {v(vT1)}")
    e(f"s_mov_b32 {s(sT)}, 0")
    for d in range(1, 4):
        e(f"s_cmp_eq_u32 {s(sSP)}, {d}")
        e(f"s_cbranch_scc1 L_op_red{d}")
    n0 = nst[0]
    for d in range(4):
        nst[0] = n0
        e(f"L_op_red{d}:")
        own = [f for f in range(18) if f % 4 == d]
        for f in range(18):
            if f % 4 == d:
                continue
            for k in range(4):
                e(f"v_bfi_b32 {v(vACC + 4 * f + k)}, s5, {v(vNB + k)}, {v(vACC + 4 * f + k)}")
            e(f"s_mov_b32 s3, {(d * 4 * 18 + f) * 1024}")
            e(f"buffer_store_dwordx4 {v(vACC + 4 * f, 4)}, {v(vPO)}, {s(SP, 4)}, s3 offen sc1")
        stamp()
        regs = []
        for k in range(1, 4):
            src = (d + k) & 3
            for i, f in enumerate(own):
                regs.append((96 + 4 * len(regs), f, src))

        def fetch(lst, lab, nxt):
            e(f"{lab}:")
            for r, f, src in lst:
                e(f"s_mov_b32 s3, {(src * 4 * 18 + f) * 1024}")
                e(f"buffer_load_dwordx4 {v(r, 4)}, {v(vPO)}, {s(SP, 4)}, s3 offen sc1")
            e(f"v_mov_b32 {v(vCK)}, 0")
            e(f"s_add_u32 {s(sT)}, {s(sT)}, 1")
            e("s_waitcnt vmcnt(0)")
            for r, f, src in lst:
                for k in range(4):
                    e(f"v_xor_b32 {v(vT3)}, {v(r + k)}, {v(vNB + k)}")
                    e(f"v_and_or_b32 {v(vCK)}, {v(vT3)}, s5, {v(vCK)}")
            e(f"v_cmp_ne_u32 vcc, 0, {v(vCK)}")
            e(f"s_cbranch_vccz {nxt}")
            e(f"s_cmp_lt_u32 {s(sT)}, 0x20000")
            e(f"s_cbranch_scc1 {lab}")

        if int(os.environ.get("K2POLL", "0")):
            fetch([x for x in regs if x[1] == own[-1]], f"L_op_poll{d}", f"L_op_retry{d}")
            fetch([x for x in regs if x[1] != own[-1]], f"L_op_retry{d}", f"L_op_ok{d}")
        else:
            fetch(regs, f"L_op_retry{d}", f"L_op_ok{d}")
        regs = [(r, f) for r, f, src in regs]
        e(f"L_op_ok{d}:")
        stamp()
        for r, f in regs:
            for k in range(4):
                e(f"v_add_f32 {v(vACC + 4 * f + k)}, {v(vACC + 4 * f + k)}, {v(r + k)}")
        for f in own:
            nb, rh = f >> 1, f & 1
            a = vACC + 4 * f
            e(f"v_cvt_pk_bf16_f32 {v(a)}, {v(a)}, {v(a + 1)}")
            e(f"v_cvt_pk_bf16_f32 {v(a + 1)}, {v(a + 2)}, {v(a + 3)}")
            e(f"buffer_store_dwordx2 {v(a, 2)}, {v(vT1 if rh == 0 else vT2)}, {s(SOUT, 4)}, 0 offen offset:{32 * nb}")
        if d < 3:
            e("s_branch L_op_fin")
    e("L_op_fin:")
    if DIAG:
        e("s_waitcnt vmcnt(0)")
        e(f"s_add_u32 s3, s2, {s(sW)}")
        e("s_cmp_eq_u32 s3, 0")
        e("s_cbranch_scc0 L_op_end")
        e("s_memrealtime s[92:93]")
        e(f"s_add_u32 s4, {s(sWS)}, {57 << 20}")
        e(f"s_addc_u32 s5, {s(sWS + 1)}, 0")
        e("s_mov_b32 s6, 4096")
        e("s_mov_b32 s7, 0x20000")
        e(f"v_lshlrev_b32 v1, 3, {v(vLANE)}")
        for i in range(8):
            e(f"buffer_load_dwordx2 v[{100 + 2 * i}:{101 + 2 * i}], v1, s[4:7], 0 offen offset:{512 * i}")
        e("s_waitcnt vmcnt(0) lgkmcnt(0)")
        e("v_readfirstlane_b32 s94, v100")
        for i in range(16):
            e(f"v_subrev_u32 v{100 + i}, s94, v{100 + i}")
        e("v_max_i32 v120, v101, v103")
        e("v_max3_i32 v120, v120, v105, v107")
        e("v_max_i32 v121, v109, v111")
        e("v_max3_i32 v121, v121, v113, v115")
        e("v_max3_i32 v122, v100, v102, v104")
        e("v_max3_i32 v122, v122, v106, v108")
        e("v_max3_i32 v122, v122, v110, v112")
        e("v_max_i32 v122, v122, v114")
        e("v_min3_i32 v123, v101, v103, v105")
        e("v_min_i32 v123, v123, v107")
        e("v_mov_b32 v124, 0")
        for k, r in enumerate((120, 121, 122)):
            e(f"v_mov_b32 v125, {4 * k}")
            e(f"buffer_atomic_smax v{r}, v125, {s(SD, 4)}, 0 offen")
        e("s_sub_u32 s90, s90, s94")
        e("s_sub_u32 s92, s92, s94")
        e("v_mov_b32 v126, s90")
        e("v_mov_b32 v127, s92")
        e("v_mov_b32 v125, 16")
        e(f"buffer_store_dwordx2 v[126:127], v125, {s(SD, 4)}, 0 offen")
        e("s_waitcnt vmcnt(0)")
    if STAMP:
        e("s_waitcnt vmcnt(0)")
        stamp()
        stamp(True)
        e(f"s_cmp_eq_u32 {s(sW)}, 0")
        e("s_cbranch_scc0 L_op_end")
        e(f"s_lshl_b32 s3, s2, 10")
        e(f"s_add_u32 s3, s3, {64 << 20}")
        e(f"s_add_u32 {s(SOo)}, {s(sWS)}, s3")
        e(f"s_addc_u32 {s(SOo + 1)}, {s(sWS + 1)}, 0")
        e(f"s_mov_b32 {s(SOo + 2)}, 256")
        e("v_mov_b32 v1, 0")
        for i in range(nst[0]):
            e(f"v_mov_b32 v2, {s(56 + 2 * i)}")
            e(f"v_mov_b32 v3, {s(57 + 2 * i)}")
            e(f"buffer_store_dwordx2 v[2:3], v1, {s(SOo, 4)}, 0 offen offset:{8 * i}")
            e("s_waitcnt vmcnt(0)")
        print("nstamps", nst[0])
    e("L_op_end:")
    e("s_endpgm")


def main():
    hdr = open(f"cdna_kernels/{NAME}.s.ref").read().split("\n")
    head = [x for x in hdr if x.startswith(";") and "@launch" not in x and "Override" not in x and "grid=ceil" not in x]
    out = head[:]
    if ONLY != "oproj":
        out.append("; @launch kernel=attn_kernel grid=(512,1,1) block=(256,1,1) lds=%d" % (SLOT * NSLOT))
    if ONLY != "attn":
        out.append("; @launch kernel=oproj_kernel grid=(256,1,1) block=(256,1,1) lds=163840")
    out.append('.amdgcn_target "amdgcn-amd-amdhsa--gfx950"')
    out.append(".text")
    out.append(".globl attn_kernel")
    out.append(".p2align 8")
    out.append(".type attn_kernel,@function")
    gen_attn()
    L.append(".globl oproj_kernel")
    L.append(".p2align 8")
    L.append(".type oproj_kernel,@function")
    gen_oproj()
    out += L
    out.append('.section .rodata,"a"')
    out.append(".p2align 6")
    out.append(""".amdhsa_kernel attn_kernel
  .amdhsa_next_free_vgpr 256
  .amdhsa_next_free_sgpr 102
  .amdhsa_accum_offset 256
  .amdhsa_group_segment_fixed_size 0
  .amdhsa_kernarg_size 104
  .amdhsa_user_sgpr_count 2
  .amdhsa_user_sgpr_kernarg_segment_ptr 1
  .amdhsa_system_sgpr_workgroup_id_x 1
.end_amdhsa_kernel
.p2align 6
.amdhsa_kernel oproj_kernel
  .amdhsa_next_free_vgpr 256
  .amdhsa_next_free_sgpr 102
  .amdhsa_accum_offset 256
  .amdhsa_group_segment_fixed_size 0
  .amdhsa_kernarg_size 104
  .amdhsa_user_sgpr_count 2
  .amdhsa_user_sgpr_kernarg_segment_ptr 1
  .amdhsa_system_sgpr_workgroup_id_x 1
.end_amdhsa_kernel""")
    open(OUT, "w").write("\n".join(out) + "\n")


if __name__ == "__main__":
    main()
```
